```python
import torch

def _softmax(x, axis=-1):
    return torch.softmax(x, dim=axis)

def _gelu(x):
    return torch.nn.functional.gelu(x, approximate='tanh')

def _silu(x):
    return torch.nn.functional.silu(x)

def _sigmoid(x):
    return torch.sigmoid(x)

def _layernorm(x, axis=-1, eps=1e-05):
    m = x.mean(dim=axis, keepdim=True)
    v = x.var(dim=axis, keepdim=True, unbiased=False)
    return (x - m) / torch.sqrt(v + eps)

def _scatter_add(tgt, idx, src, axis=0):
    return tgt.clone().index_add_(axis, idx, src)

def _segment_sum(src, seg, n):
    out = torch.zeros((n,) + src.shape[1:], dtype=src.dtype)
    return out.index_add_(0, seg, src)

def _pad(x, pw):
    flat = tuple((v for pair in reversed(pw) for v in pair))
    return torch.nn.functional.pad(x, flat)
kernel_name = 'standalone__conformer_family_branchformer__speech'

def setup_inputs():

    _w = lambda a: (lambda t: t.to(torch.bfloat16) if t.is_floating_point() else t)(torch.as_tensor(a))
    B, T, D, K = (2, 4000, 144, 31)
    s = float(D) ** (-0.5)
    return {'x': _w((lambda *s: torch.randn(*s, dtype=torch.bfloat16) * 0.05)(B, T, D)), 'w_q': _w((lambda *s: torch.randn(*s, dtype=torch.bfloat16) * 1.6)(D, D) * s), 'w_k': _w((lambda *s: torch.randn(*s, dtype=torch.bfloat16) * 1.6)(D, D) * s), 'w_v': _w((lambda *s: torch.randn(*s, dtype=torch.bfloat16) * 0.8)(D, D) * s), 'w_ao': _w((lambda *s: torch.randn(*s, dtype=torch.bfloat16) * 0.8)(D, D) * s), 'w_up': _w((lambda *s: torch.randn(*s, dtype=torch.bfloat16) * 1.6)(D, 2 * D) * s), 'dw': _w((lambda *s: torch.randn(*s, dtype=torch.bfloat16) * 1.6)(K, D) * (1.0 / K)), 'w_dn': _w((lambda *s: torch.randn(*s, dtype=torch.bfloat16) * 0.8)(D, D) * s), 'w_merge': _w((lambda *s: torch.randn(*s, dtype=torch.bfloat16) * 0.8)(2 * D, D) * s)}

def reference(x, w_q, w_k, w_v, w_ao, w_up, dw, w_dn, w_merge):
    B, T, D = x.shape
    K = dw.shape[0]
    xa = _layernorm(x, axis=-1)
    q = torch.einsum('btd,de->bte', xa, w_q)
    k = torch.einsum('btd,de->bte', xa, w_k)
    v = torch.einsum('btd,de->bte', xa, w_v)
    logits = torch.einsum('btd,bsd->bts', q, k) * float(D) ** (-0.5)
    attn = _softmax(logits, axis=-1)
    ya = torch.einsum('bts,bsd->btd', attn, v)
    ya = torch.einsum('btd,de->bte', ya, w_ao)
    xc = _layernorm(x, axis=-1)
    h = _gelu(torch.einsum('btd,de->bte', xc, w_up))
    u = h[..., :D].clone()
    g = _layernorm(h[..., D:], axis=-1)
    pad = K // 2
    gp = _pad(g, ((0, 0), (pad, pad), (0, 0)))
    conv = torch.zeros_like(g)
    for i in range(K):
        conv = conv + gp[:, i:i + T, :] * dw[i][None, None, :]
    yc = torch.einsum('btd,de->bte', u * conv, w_dn)
    merged = torch.concatenate([ya, yc], axis=-1)
    out = torch.einsum('btf,fd->btd', merged, w_merge)
    return x + out
```

```python
import re

def v(i, n=1): return f"v{i}" if n == 1 else f"v[{i}:{i+n-1}]"
def a(i, n=1): return f"a{i}" if n == 1 else f"a[{i}:{i+n-1}]"
def s(i, n=1): return f"s{i}" if n == 1 else f"s[{i}:{i+n-1}]"

_REG = re.compile(r'^(-|abs\()?([vas])(?:(\d+)|\[(\d+):(\d+)\])\)?$')

def parse_reg(tok):
    t = tok.strip()
    if t.startswith('-'): t = t[1:]
    if t.startswith('|') and t.endswith('|'): t = t[1:-1]
    if t.startswith('abs(') and t.endswith(')'): t = t[4:-1]
    if t == 'vcc': return [('s', 'vcc')]
    if t in ('vcc_lo', 'vcc_hi'): return [('s', 'vcc')]
    if t == 'exec': return [('s', 'exec')]
    if t == 'm0': return [('s', 'm0')]
    m = re.match(r'^([vas])(?:(\d+)|\[(\d+):(\d+)\])$', t)
    if not m: return []
    k = m.group(1)
    if m.group(2) is not None: return [(k, int(m.group(2)))]
    return [(k, i) for i in range(int(m.group(3)), int(m.group(4)) + 1)]

TRANS = ('v_exp_f32', 'v_log_f32', 'v_rcp_f32', 'v_rsq_f32', 'v_sqrt_f32', 'v_sin_f32', 'v_cos_f32', 'v_rcp_iflag_f32')

def split_ops(txt):
    ops = []; depth = 0; cur = ''
    for ch in txt:
        if ch in '[(': depth += 1
        if ch in '])': depth -= 1
        if ch == ',' and depth == 0:
            ops.append(cur.strip()); cur = ''
        else: cur += ch
    if cur.strip(): ops.append(cur.strip())
    return ops

class Ins:
    __slots__ = ('text', 'mn', 'rd', 'wr', 'kind', 'passes', 'srcc', 'ab', 'states', 'dpp', 'label', 'target')
    def __init__(self, text):
        self.text = text
        t = text.split(';')[0].strip()
        self.label = None; self.target = None
        self.rd = set(); self.wr = set(); self.kind = 'other'; self.passes = 0; self.srcc = set(); self.ab = set(); self.states = 1; self.dpp = False
        if t.endswith(':'):
            self.mn = ''; self.kind = 'label'; self.label = t[:-1]; self.states = 0; return
        if not t or t.startswith('.'):
            self.mn = ''; self.kind = 'dir'; self.states = 0; return
        parts = t.split(None, 1)
        mn = parts[0]; self.mn = mn
        rest = parts[1] if len(parts) > 1 else ''
        ops = split_ops(rest)
        mods = ''
        if ops:
            last = ops[-1].split()
            if len(last) > 1:
                ops[-1] = last[0]; mods = ' '.join(last[1:])
        R = [parse_reg(o) for o in ops]
        flat = lambda L: set(x for l in L for x in l)
        if mn == 's_nop':
            self.kind = 'nop'; self.states = int(ops[0], 0) + 1
        elif mn.startswith('v_mfma'):
            self.kind = 'mfma'
            self.passes = 8 if '32x32x16' in mn else 4 if '16x16x32' in mn else None
            assert self.passes, mn
            self.wr = set(R[0]); self.ab = set(R[1]) | set(R[2]); self.srcc = set(R[3]); self.rd = self.ab | self.srcc
        elif mn.startswith('v_'):
            self.kind = 'trans' if mn.replace('_e32', '').replace('_e64', '') in TRANS else 'valu'
            if 'dpp' in mn or 'quad_perm' in mods or 'row_' in mods: self.dpp = True
            if mn.startswith('v_permlane') and 'swap' in mn:
                self.kind = 'permlane'; self.rd = flat(R); self.wr = flat(R)
            elif mn.startswith('v_cmp'):
                self.wr = set(R[0]); self.rd = flat(R[1:])
            elif mn.startswith(('v_add_co', 'v_sub_co', 'v_addc_co', 'v_subb_co', 'v_subrev_co')):
                self.wr = set(R[0]) | set(R[1]); self.rd = flat(R[2:])
            elif mn.startswith('v_nop'):
                self.kind = 'nop'
            else:
                self.wr = set(R[0]); self.rd = flat(R[1:])
                if mn.startswith(('v_fmac', 'v_mac', 'v_pk_fmac', 'v_dot2c')) or self.dpp: self.rd |= set(R[0])
                if mn.startswith('v_cndmask') and len(ops) == 3: self.rd.add(('s', 'vcc'))
                if mn.startswith(('v_readfirstlane', 'v_readlane')): self.kind = 'readlane'
        elif mn.startswith('ds_'):
            self.kind = 'ds'
            if mn.startswith(('ds_read', 'ds_bpermute', 'ds_permute', 'ds_swizzle')) or '_rtn' in mn:
                self.wr = set(R[0]); self.rd = flat(R[1:])
            else: self.rd = flat(R)
        elif mn.startswith(('buffer_', 'global_', 'flat_')):
            self.kind = 'vmem'
            if ' lds' in (' ' + mods) or '_lds_' in mn:
                self.kind = 'dma'; self.rd = flat(R) | {('s', 'm0')}
            elif 'load' in mn:
                self.wr = set(R[0]); self.rd = flat(R[1:])
            elif 'atomic' in mn and 'sc0' in mods:
                self.wr = set(R[0]); self.rd = flat(R)
            elif mn in ('buffer_wbl2', 'buffer_inv'):
                pass
            else:
                self.rd = flat(R)
                if 'x4' in mn or 'x3' in mn:
                    self.kind = 'wstore'
                    self.ab = set(R[0]) if mn.startswith('buffer') else set(R[1])
        elif mn.startswith('s_'):
            self.kind = 'salu'
            if mn.startswith(('s_cbranch', 's_branch')):
                self.kind = 'branch'; self.target = ops[0]
            elif mn.startswith(('s_cmp', 's_waitcnt', 's_barrier', 's_endpgm', 's_setprio', 's_sleep', 's_bitcmp')):
                self.rd = flat(R)
            else:
                self.wr = set(R[0]) if R else set(); self.rd = flat(R[1:])
                if 'saveexec' in mn: self.wr.add(('s', 'exec'))
        else:
            raise ValueError('unknown instr ' + text)

VALUK = ('valu', 'trans', 'permlane', 'readlane')
XD = {2: 5, 4: 8, 8: 12, 16: 20}
XC = {2: 4, 4: 6, 8: 10, 16: 18}
XW = {2: 1, 4: 3, 8: 7, 16: 15}

def need(p, c):
    n = 0
    pv = p.kind in VALUK; cv = c.kind in VALUK
    pw_v = {r for r in p.wr if r[0] != 's'}; pw_s = {r for r in p.wr if r[0] == 's'}
    if pv:
        if c.kind == 'mfma' and (pw_v & c.rd): n = max(n, 2)
        if c.kind == 'permlane' and (pw_v & c.rd): n = max(n, 2)
        if cv and c.dpp and (pw_v & c.rd): n = max(n, 2)
        if c.kind == 'readlane' and (pw_v & c.rd): n = max(n, 1)
        if p.kind == 'trans' and cv and c.kind != 'trans' and (pw_v & c.rd): n = max(n, 1)
        if p.kind == 'trans' and c.kind == 'trans' and (pw_v & c.rd): n = max(n, 1)
        if pw_s:
            if cv and (pw_s & c.rd): n = max(n, 4 if c.kind == 'readlane' else 2)
            if c.kind in ('vmem', 'dma', 'wstore') and (pw_s & c.rd): n = max(n, 5)
            if ('s', 'exec') in pw_s and c.kind == 'mfma': n = max(n, 4)
    if p.kind == 'mfma':
        P = p.passes
        if c.kind == 'mfma':
            if p.wr & c.ab: n = max(n, XD[P])
            if p.wr & c.srcc:
                if p.wr == c.srcc and c.passes == P: n = max(n, 0)
                else: n = max(n, XC[P])
            elif p.wr & c.wr: n = max(n, XC[P])
        elif cv:
            if p.wr & (c.rd | c.wr): n = max(n, XD[P])
            if p.srcc & c.wr: n = max(n, XW[P])
        elif c.kind in ('ds', 'vmem', 'dma', 'wstore'):
            if p.wr & (c.rd | c.wr): n = max(n, XD[P])
    if p.kind == 'salu' and ('s', 'm0') in p.wr and c.kind == 'dma': n = max(n, 1)
    if p.kind == 'wstore' and (p.ab & c.wr): n = max(n, 2 if cv else 1)
    return n

class Asm:
    def __init__(self):
        self.L = []
        self.nlab = 0
    def __call__(self, txt):
        for line in txt.split('\n'):
            line = line.strip()
            if line: self.L.append(line)
    def label(self, base='L'):
        self.nlab += 1
        return f"{base}_{self.nlab}"
    def extend(self, lines):
        for l in lines: self(l)

def fix_hazards(lines, verbose=False):
    ins = [Ins(l) for l in lines]
    out = []
    def required(hist, c):
        dist = 0; worst = 0
        for p in reversed(hist):
            if dist >= 20: break
            if p.states == 0: continue
            n = need(p, c)
            if n > dist: worst = max(worst, n - dist)
            dist += p.states
        return worst
    hist = []
    ninserted = 0
    for c in ins:
        if c.kind not in ('label', 'dir'):
            w = required(hist, c)
            while w > 0:
                k = min(w, 16)
                nop = Ins(f"s_nop {k-1}")
                out.append(nop); hist.append(nop); w -= k; ninserted += 1
                if verbose: print('  inserted', nop.text, 'before', c.text)
        out.append(c); hist.append(c)
        if c.mn in ('s_branch', 's_endpgm', 's_setpc_b64'):
            hist = []
    labpos = {c.label: i for i, c in enumerate(out) if c.kind == 'label'}
    for i, c in enumerate(out):
        if c.kind == 'branch' and c.target in labpos:
            h = []
            j = i
            tot = 0
            while j >= 0 and tot < 24:
                if out[j].mn in ('s_branch', 's_endpgm') and j != i: break
                h.insert(0, out[j]); tot += out[j].states; j -= 1
            j = labpos[c.target]; tot = 0
            while j < len(out) and tot < 24:
                t = out[j]
                if t.kind not in ('label', 'dir'):
                    w = required(h, t)
                    if w > 0:
                        raise RuntimeError(f"hazard across branch {c.text} -> {t.text}: need {w} more states")
                h.append(t); tot += t.states; j += 1
                if t.mn in ('s_branch', 's_endpgm'): break
    return [c.text for c in out], ninserted

def kernel_header(name):
    return f""".globl {name}
.p2align 8
.type {name},@function
{name}:"""

def kernel_desc(name, vgpr, accum, sgpr=96):
    return f""".p2align 6
.amdhsa_kernel {name}
  .amdhsa_next_free_vgpr {vgpr}
  .amdhsa_next_free_sgpr {sgpr}
  .amdhsa_accum_offset {accum}
  .amdhsa_group_segment_fixed_size 0
  .amdhsa_kernarg_size 96
  .amdhsa_user_sgpr_count 2
  .amdhsa_user_sgpr_kernarg_segment_ptr 1
  .amdhsa_system_sgpr_workgroup_id_x 1
.end_amdhsa_kernel"""
```

```python
from asmlib import *
from layout import *
import struct, math

def f32(x): return "0x%08x" % struct.unpack('<I', struct.pack('<f', x))[0]

L_ACT = 0
L_ACT2 = 18432
L_WA = 36864
L_WB = L_WA + 41984
K1_LDS = L_WB + 41984 + 1024
S_P = 4
S_X, S_WQ, S_WK, S_WV, S_WAO, S_WUP, S_DW, S_WDN, S_WM, S_OUT, S_DBG, S_WS = [4 + 2*i for i in range(12)]
R_A, R_B, R_C, R_WS = 28, 32, 36, 40
S_W, S_RB, S_RT, S_T = 44, 45, 46, 47
S_0, S_1, S_2, S_3, S_4 = 48, 49, 50, 51, 52
V_LANE = 1; V_L16 = 2; V_TR = 3; V_TR2 = 4; V_A0 = 5; V_A1 = 6; V_A2 = 7; V_A3 = 8
V_X = 12
V_F = 24
V_T = 44
V_B = 60
V_AF = 132
V_WK = 96
NV1 = 164
A_C = 0
NA1 = 0
V_C = 24

def srd(A, r, ptr, size):
    A(f"s_mov_b32 {s(r)}, {s(ptr)}\ns_and_b32 {s(r+1)}, {s(ptr+1)}, 0xffff\ns_mov_b32 {s(r+2)}, {size}\ns_mov_b32 {s(r+3)}, 0x00020000")

def dma_mat(A, r, src_off, nbytes, lds_off, tag):
    npieces = (nbytes + 1023) // 1024
    per = npieces // 10
    extra = npieces - per * 10
    A(f"s_mul_i32 {s(S_0)}, {s(S_W)}, {per*1024}")
    A(f"s_add_u32 m0, {s(S_0)}, {lds_off}")
    if src_off: A(f"s_add_u32 {s(S_0)}, {s(S_0)}, {src_off}")
    else: A("s_nop 0")
    for k in range(per):
        if k and k % 4 == 0:
            A(f"s_add_u32 m0, m0, 4096\ns_add_u32 {s(S_0)}, {s(S_0)}, 4096")
        A(f"buffer_load_dwordx4 {v(V_L16)}, {s(r,4)}, {s(S_0)} offen offset:{1024*(k%4)} lds")
    assert extra <= 1
    if extra:
        lab = f"K1_DX_{tag}"
        A(f"s_cmp_eq_u32 {s(S_W)}, 9\ns_cbranch_scc0 {lab}")
        A(f"s_mov_b32 m0, {lds_off + per*10*1024}")
        A(f"s_mov_b32 {s(S_0)}, {src_off + per*10*1024}")
        A(f"buffer_load_dwordx4 {v(V_L16)}, {s(r,4)}, {s(S_0)} offen lds")
        A(f"{lab}:")

def bf16_round_to_f32(A, dst, src):
    A(f"v_cvt_pk_bf16_f32 {v(dst)}, {v(src)}, {v(src)}")
    A(f"v_and_b32 {v(dst)}, 0xffff0000, {v(dst)}")

def red8(A, r, t):
    A(f"v_add_f32_dpp {v(t)}, {v(r)}, {v(r)} quad_perm:[1,0,3,2] row_mask:0xf bank_mask:0xf")
    A(f"v_add_f32_dpp {v(r)}, {v(t)}, {v(t)} quad_perm:[2,3,0,1] row_mask:0xf bank_mask:0xf")
    A(f"v_add_f32_dpp {v(t)}, {v(r)}, {v(r)} row_half_mirror row_mask:0xf bank_mask:0xf")
    A(f"v_mov_b32 {v(r)}, {v(t)}")

def ln_load(A):
    A(f"v_lshrrev_b32 {v(V_T)}, 3, {v(V_LANE)}")
    A(f"v_and_b32 {v(V_T+1)}, 7, {v(V_LANE)}")
    A(f"v_mul_u32_u24 {v(V_T+2)}, 288, {v(V_T)}")
    A(f"v_lshl_add_u32 {v(V_A0)}, {v(V_T+1)}, 2, {v(V_T+2)}")
    A(f"s_lshl_b32 {s(S_0)}, {s(S_RB)}, 6")
    A(f"s_lshl_b32 {s(S_1)}, {s(S_W)}, 3")
    A(f"s_add_u32 {s(S_0)}, {s(S_0)}, {s(S_1)}")
    A(f"s_mul_i32 {s(S_0)}, {s(S_0)}, 288")
    for k in range(9):
        A(f"buffer_load_dword {v(V_X+k)}, {v(V_A0)}, {s(R_A,4)}, {s(S_0)} offen offset:{32*k}")
    A(f"v_add_u32 {v(V_T)}, {s(S_1)}, {v(V_T)}")
    A(f"v_lshrrev_b32 {v(V_T+2)}, 5, {v(V_T)}")
    A(f"v_and_b32 {v(V_T)}, 31, {v(V_T)}")
    A(f"v_lshrrev_b32 {v(V_T+3)}, 2, {v(V_T+1)}")
    A(f"v_lshl_add_u32 {v(V_T)}, {v(V_T+3)}, 5, {v(V_T)}")
    A(f"v_lshlrev_b32 {v(V_T)}, 4, {v(V_T)}")
    A(f"v_and_b32 {v(V_T+1)}, 3, {v(V_T+1)}")
    A(f"v_lshl_add_u32 {v(V_T)}, {v(V_T+1)}, 2, {v(V_T)}")
    A(f"v_mul_u32_u24 {v(V_T+2)}, 9216, {v(V_T+2)}")
    A(f"v_add3_u32 {v(V_A1)}, {v(V_T)}, {v(V_T+2)}, {s(S_4)}")

def ln_compute(A):
    F = V_F; T = V_T
    for k in range(9):
        A(f"v_lshlrev_b32 {v(F+2*k)}, 16, {v(V_X+k)}")
        A(f"v_and_b32 {v(F+2*k+1)}, 0xffff0000, {v(V_X+k)}")
    A(f"v_add_f32 {v(T)}, {v(F)}, {v(F+1)}")
    A(f"v_add_f32 {v(T+1)}, {v(F+2)}, {v(F+3)}")
    for k in range(4, 18, 2):
        A(f"v_add_f32 {v(T)}, {v(T)}, {v(F+k)}")
        A(f"v_add_f32 {v(T+1)}, {v(T+1)}, {v(F+k+1)}")
    A(f"v_add_f32 {v(T)}, {v(T)}, {v(T+1)}")
    red8(A, T, T+1)
    A(f"v_mul_f32 {v(T)}, {f32(1.0/144)}, {v(T)}")
    bf16_round_to_f32(A, T+2, T)
    A(f"v_sub_f32 {v(T+3)}, {v(T)}, {v(T+2)}")
    for k in range(18): A(f"v_sub_f32 {v(F+k)}, {v(F+k)}, {v(T+2)}")
    A(f"v_mul_f32 {v(T+4)}, {v(F)}, {v(F)}")
    A(f"v_mul_f32 {v(T+5)}, {v(F+1)}, {v(F+1)}")
    for k in range(2, 18, 2):
        A(f"v_fmac_f32 {v(T+4)}, {v(F+k)}, {v(F+k)}")
        A(f"v_fmac_f32 {v(T+5)}, {v(F+k+1)}, {v(F+k+1)}")
    A(f"v_add_f32 {v(T+4)}, {v(T+4)}, {v(T+5)}")
    for k in range(9): A(f"v_cvt_pk_bf16_f32 {v(V_X+k)}, {v(F+2*k)}, {v(F+2*k+1)}")
    red8(A, T+4, T+5)
    A(f"v_mul_f32 {v(T+4)}, {f32(1.0/144)}, {v(T+4)}")
    A(f"v_fma_f32 {v(T+4)}, -{v(T+3)}, {v(T+3)}, {v(T+4)}")
    A(f"v_max_f32 {v(T+4)}, 0, {v(T+4)}")
    bf16_round_to_f32(A, T+4, T+4)
    A(f"v_add_f32 {v(T+4)}, {f32(1e-5)}, {v(T+4)}")
    bf16_round_to_f32(A, T+4, T+4)
    A(f"v_sqrt_f32 {v(T+4)}, {v(T+4)}")
    bf16_round_to_f32(A, T+4, T+4)
    A(f"v_rcp_f32 {v(T+4)}, {v(T+4)}")
    for k in range(9):
        A(f"v_lshlrev_b32 {v(F+2*k)}, 16, {v(V_X+k)}")
        A(f"v_and_b32 {v(F+2*k+1)}, 0xffff0000, {v(V_X+k)}")
    for k in range(18): A(f"v_mul_f32 {v(F+k)}, {v(F+k)}, {v(T+4)}")
    for k in range(9):
        A(f"v_cvt_pk_bf16_f32 {v(V_X+k)}, {v(F+2*k)}, {v(F+2*k+1)}")
        A(f"ds_write_b32 {v(V_A1)}, {v(V_X+k)} offset:{1024*k}")

def tr_base(A, dst, stride, tcol_sgpr):
    T = V_T; L = V_LANE
    A(f"v_lshrrev_b32 {v(T)}, 5, {v(L)}")
    A(f"v_bfe_u32 {v(T+1)}, {v(L)}, 2, 2")
    A(f"v_lshl_add_u32 {v(T)}, {v(T)}, 3, {v(T+1)}")
    A(f"v_mul_u32_u24 {v(T)}, {stride}, {v(T)}")
    A(f"v_bfe_u32 {v(T+1)}, {v(L)}, 4, 1")
    A(f"v_lshl_add_u32 {v(T)}, {v(T+1)}, 5, {v(T)}")
    A(f"v_and_b32 {v(T+1)}, 1, {v(L)}")
    A(f"v_lshl_add_u32 {v(T)}, {v(T+1)}, 4, {v(T)}")
    A(f"v_bfe_u32 {v(T+1)}, {v(L)}, 1, 1")
    A(f"v_lshl_add_u32 {v(T)}, {v(T+1)}, 3, {v(T)}")
    A(f"v_add_u32 {v(dst)}, {s(tcol_sgpr)}, {v(T)}")

def tr_reads(k, slot, stride, base, base2=None):
    out = []
    for rho in (0, 1):
        off = (16 * k + 4 * rho) * stride
        b = base
        if off > 65535 - 0:
            assert base2 is not None
            b = base2; off -= 80 * stride
        out.append(f"ds_read_b64_tr_b16 {v(V_AF+4*slot+2*rho,2)}, {v(b)} offset:{off}")
    return out

def gemm_tr(A, stride, base, base2, bsets, accs, swapped=False):
    NS = 8; PD = 3
    for k in range(PD):
        for r in tr_reads(k, k % NS, stride, base, base2): A(r)
    issued = PD
    for k in range(9):
        A(f"s_waitcnt lgkmcnt({2 * (issued - (k + 1))})")
        if k == 0:
            for _ in range(2):
                for r in tr_reads(issued, issued % NS, stride, base, base2): A(r)
                issued += 1
        for b, c in zip(bsets, accs):
            x, y = v(V_AF + 4 * (k % NS), 4), v(b + 4 * k, 4)
            if swapped: x, y = y, x
            A(f"v_mfma_f32_32x32x16_bf16 {v(c,16)}, {x}, {y}, {v(c,16) if k else '0'}")
        if issued < 9:
            for r in tr_reads(issued, issued % NS, stride, base, base2): A(r)
            issued += 1

def read_bfrags(A, dst, addr, off):
    for k in range(9): A(f"ds_read_b128 {v(dst+4*k,4)}, {v(addr)} offset:{off + 1024*k}")

def pack8(A, dst, src):
    for i in range(4): A(f"v_cvt_pk_bf16_f32 {v(dst+i)}, {v(src+2*i)}, {v(src+2*i+1)}")

def pi_row(A, dst, t0, t1):
    L = V_LANE
    A(f"v_and_b32 {v(dst)}, 0x13, {v(L)}")
    A(f"v_bfe_u32 {v(t0)}, {v(L)}, 3, 1")
    A(f"v_bfe_u32 {v(t1)}, {v(L)}, 2, 1")
    A(f"v_lshl_add_u32 {v(dst)}, {v(t0)}, 2, {v(dst)}")
    A(f"v_lshl_add_u32 {v(dst)}, {v(t1)}, 3, {v(dst)}")

def gen_k1():
    A = Asm()
    A(kernel_header("k1_kernel"))
    A("s_cmp_ge_u32 s2, 256\ns_cbranch_scc1 K1_END")
    A(f"s_load_dwordx16 s[4:19], s[0:1], 0")
    A(f"s_load_dwordx8 s[20:27], s[0:1], 64")
    A(f"v_lshrrev_b32 {v(2)}, 6, v0")
    A(f"v_and_b32 {v(V_LANE)}, 63, v0")
    A(f"v_readfirstlane_b32 {s(S_W)}, {v(2)}")
    A(f"v_lshlrev_b32 {v(V_L16)}, 4, {v(V_LANE)}")
    A(f"s_and_b32 {s(S_0)}, s2, 7")
    A(f"s_lshr_b32 {s(S_1)}, s2, 3")
    A(f"s_and_b32 {s(S_2)}, {s(S_1)}, 1")
    A(f"s_lshr_b32 {s(S_1)}, {s(S_1)}, 1")
    A(f"s_lshl_b32 {s(S_RB)}, {s(S_0)}, 4")
    A(f"s_add_u32 {s(S_RB)}, {s(S_RB)}, {s(S_1)}")
    A(f"s_cmp_ge_u32 {s(S_W)}, 5")
    A(f"s_cselect_b32 {s(S_RT)}, 1, 0")
    A(f"s_mul_i32 {s(S_0)}, {s(S_RT)}, 5")
    A(f"s_sub_u32 {s(S_T)}, {s(S_W)}, {s(S_0)}")
    A(f"s_mov_b32 {s(S_4)}, {L_ACT}")
    A("s_waitcnt lgkmcnt(0)")
    srd(A, R_WS, S_WS, WS_SIZE)
    A(f"s_cmp_ge_u32 {s(S_RB)}, 125\ns_cbranch_scc1 K1_WTYPE")
    srd(A, R_A, S_X, 2304000)
    A(f"s_cmp_ge_u32 {s(S_W)}, 8\ns_cbranch_scc1 K1_NOX")
    ln_load(A)
    A("K1_NOX:")
    A(f"s_cmp_eq_u32 {s(S_2)}, 1\ns_cbranch_scc1 K1_UG")
    srd(A, R_B, S_WQ, 41472)
    srd(A, R_C, S_WK, 41472)
    dma_mat(A, R_B, 0, 41472, L_WA, "q")
    pi_row(A, V_T+8, V_T+9, V_T+10)
    A(f"v_mul_u32_u24 {v(V_T+8)}, 288, {v(V_T+8)}")
    A(f"v_lshrrev_b32 {v(V_T+9)}, 5, {v(V_LANE)}")
    A(f"v_lshl_add_u32 {v(V_A2)}, {v(V_T+9)}, 4, {v(V_T+8)}")
    A(f"s_mul_i32 {s(S_0)}, {s(S_T)}, {32*288}")
    for k in range(9):
        A(f"buffer_load_dwordx4 {v(V_WK+4*k,4)}, {v(V_A2)}, {s(R_C,4)}, {s(S_0)} offen offset:{32*k}")
    A(f"s_cmp_ge_u32 {s(S_W)}, 8\ns_cbranch_scc1 K1_Q_NOLN")
    A(f"s_waitcnt vmcnt(13)")
    ln_compute(A)
    A("K1_Q_NOLN:")
    A(f"s_lshl_b32 {s(S_0)}, {s(S_T)}, 6")
    A(f"s_add_u32 {s(S_0)}, {s(S_0)}, {L_WA}")
    tr_base(A, V_TR, 288, S_0)
    A(f"s_mul_i32 {s(S_1)}, {s(S_RT)}, 9216")
    A(f"v_add_u32 {v(V_A3)}, {s(S_1)}, {v(V_L16)}")
    t = V_T; L = V_LANE
    A(f"v_bfe_u32 {v(t)}, {v(L)}, 3, 2")
    A(f"v_bfe_u32 {v(t+1)}, {v(L)}, 2, 1")
    A(f"v_and_b32 {v(t+2)}, 3, {v(L)}")
    A(f"v_lshrrev_b32 {v(t+3)}, 5, {v(L)}")
    A(f"v_lshrrev_b32 {v(t+4)}, 1, {v(t)}")
    A(f"v_xor_b32 {v(t+4)}, {v(t+4)}, {v(t+3)}")
    A(f"v_mul_u32_u24 {v(t)}, 144, {v(t)}")
    A(f"v_mad_u32_u24 {v(t)}, {v(t+2)}, 36, {v(t)}")
    A(f"v_mad_u32_u24 {v(t)}, {v(t+1)}, 18, {v(t)}")
    A(f"v_add_u32 {v(t)}, {v(t)}, {v(t+4)}")
    A(f"v_lshlrev_b32 {v(V_A0)}, 4, {v(t)}")
    A(f"s_lshl_b32 {s(S_2)}, {s(S_RB)}, 1")
    A(f"s_add_u32 {s(S_2)}, {s(S_2)}, {s(S_RT)}")
    A(f"s_mul_i32 {s(S_2)}, {s(S_2)}, {TILE}")
    A(f"s_waitcnt vmcnt(9) lgkmcnt(0)")
    A("s_barrier")
    read_bfrags(A, V_B, V_A3, L_ACT)
    gemm_tr(A, 288, V_TR, None, [V_B], [V_C])
    A("s_waitcnt vmcnt(0)")
    A(f"s_add_u32 {s(S_3)}, {s(S_2)}, {XA_OFF}")
    for T in range(5):
        lab = f"K1_XS{T}"
        A(f"s_cmp_eq_u32 {s(S_T)}, {T}\ns_cbranch_scc0 {lab}")
        A(f"buffer_store_dwordx4 {v(V_B+4*T,4)}, {v(V_A0)}, {s(R_WS,4)}, {s(S_3)} offen offset:{32*T}")
        if T + 5 < 9:
            A(f"buffer_store_dwordx4 {v(V_B+4*(T+5),4)}, {v(V_A0)}, {s(R_WS,4)}, {s(S_3)} offen offset:{32*(T+5)}")
        A(f"{lab}:")
    pack8(A, V_AF, V_C); pack8(A, V_AF+4, V_C+8)
    A(f"s_lshl_b32 {s(S_0)}, {s(S_T)}, 11")
    A(f"v_add_u32 {v(V_A1)}, {s(S_0)}, {v(V_A3)}")
    A(f"v_add_u32 {v(V_A1)}, {L_ACT2}, {v(V_A1)}")
    A(f"ds_write_b128 {v(V_A1)}, {v(V_AF,4)}")
    A(f"s_cmp_eq_u32 {s(S_T)}, 4\ns_cbranch_scc1 K1_Q_W1")
    A(f"ds_write_b128 {v(V_A1)}, {v(V_AF+4,4)} offset:1024")
    A("K1_Q_W1:")
    A(f"v_add_u32 {v(V_A1)}, {L_ACT2}, {v(V_A3)}")
    A("s_waitcnt lgkmcnt(0)")
    A("s_barrier")
    read_bfrags(A, V_B, V_A1, 0)
    for k in range(9):
        A(f"s_waitcnt lgkmcnt({8-k})")
        A(f"v_mfma_f32_32x32x16_bf16 {v(V_C,16)}, {v(V_WK+4*k,4)}, {v(V_B+4*k,4)}, {v(V_C,16) if k else '0'}")
    c = 144 ** -0.5 * math.log2(math.e)
    A(f"s_mov_b32 {s(S_1)}, {f32(c)}")
    A(f"s_add_u32 {s(S_3)}, {s(S_2)}, {QP_OFF}")
    A(f"s_add_u32 {s(S_3)}, {s(S_3)}, {s(S_0)}")
    for i in range(16): A(f"v_mul_f32 {v(V_C+i)}, {s(S_1)}, {v(V_C+i)}")
    pack8(A, V_AF, V_C); pack8(A, V_AF+4, V_C+8)
    A(f"buffer_store_dwordx4 {v(V_AF,4)}, {v(V_L16)}, {s(R_WS,4)}, {s(S_3)} offen")
    A(f"s_cmp_eq_u32 {s(S_T)}, 4\ns_cbranch_scc1 K1_END")
    A(f"buffer_store_dwordx4 {v(V_AF+4,4)}, {v(V_L16)}, {s(R_WS,4)}, {s(S_3)} offen offset:1024")
    A("s_branch K1_END")
    A("K1_UG:")
    srd(A, R_B, S_WUP, 82944)
    dma_mat(A, R_B, 0, 82944, L_WA, "u")
    A(f"s_cmp_ge_u32 {s(S_W)}, 8\ns_cbranch_scc1 K1_U_NOLN")
    A(f"s_waitcnt vmcnt(8)")
    ln_compute(A)
    A("K1_U_NOLN:")
    A(f"s_lshl_b32 {s(S_0)}, {s(S_W)}, 6")
    A(f"s_add_u32 {s(S_0)}, {s(S_0)}, {L_WA}")
    tr_base(A, V_TR, 576, S_0)
    A(f"v_add_u32 {v(V_TR2)}, {80*576}, {v(V_TR)}")
    A(f"v_add_u32 {v(V_A3)}, {L_ACT}, {v(V_L16)}")
    A(f"s_waitcnt vmcnt(0) lgkmcnt(0)")
    A("s_barrier")
    A(f"s_cmp_eq_u32 {s(S_W)}, 9\ns_cbranch_scc1 K1_U_IDLE")
    read_bfrags(A, V_B, V_A3, 0)
    A("s_waitcnt lgkmcnt(4)")
    read_bfrags(A, V_B+36, V_A3, 9216)
    A("s_waitcnt lgkmcnt(0)")
    gemm_tr(A, 576, V_TR, V_TR2, [V_B, V_B+36], [V_C, V_C+16])
    k0 = -2.0 * math.sqrt(2.0 / math.pi) * math.log2(math.e)
    k1 = k0 * 0.044715
    A(f"s_mov_b32 {s(S_0)}, {f32(k1)}")
    A(f"v_mov_b32 {v(V_AF)}, {f32(k0)}")
    G = V_B
    for i in range(32): A(f"v_mul_f32 {v(G+i)}, {v(V_C+i)}, {v(V_C+i)}")
    for i in range(32): A(f"v_fma_f32 {v(G+i)}, {v(G+i)}, {s(S_0)}, {v(V_AF)}")
    for i in range(32): A(f"v_mul_f32 {v(G+i)}, {v(G+i)}, {v(V_C+i)}")
    for i in range(32): A(f"v_exp_f32 {v(G+i)}, {v(G+i)}")
    for i in range(32): A(f"v_add_f32 {v(G+i)}, 1.0, {v(G+i)}")
    for i in range(32): A(f"v_rcp_f32 {v(G+i)}, {v(G+i)}")
    for i in range(32): A(f"v_mul_f32 {v(V_C+i)}, {v(V_C+i)}, {v(G+i)}")
    A(f"v_and_b32 {v(G)}, 31, {v(V_LANE)}")
    A(f"v_mul_u32_u24 {v(G)}, 288, {v(G)}")
    A(f"v_lshrrev_b32 {v(G+1)}, 5, {v(V_LANE)}")
    A(f"v_lshl_add_u32 {v(V_A0)}, {v(G+1)}, 4, {v(G)}")
    A(f"s_mul_i32 {s(S_2)}, {s(S_RB)}, {64*288}")
    A(f"s_lshl_b32 {s(S_0)}, {s(S_W)}, 6")
    A(f"s_add_u32 {s(S_2)}, {s(S_2)}, {s(S_0)}")
    A(f"s_cmp_ge_u32 {s(S_W)}, 4\ns_cbranch_scc1 K1_U_G")
    A(f"s_add_u32 {s(S_3)}, {s(S_2)}, {U_OFF}")
    for rt in range(2):
        for kp in range(2):
            pk = V_AF + 4 * (2 * rt + kp)
            pack8(A, pk, V_C + 16 * rt + 8 * kp)
            if rt == 1 and kp == 0: A(f"s_add_u32 {s(S_3)}, {s(S_3)}, {32*288}")
            A(f"buffer_store_dwordx4 {v(pk,4)}, {v(V_A0)}, {s(R_WS,4)}, {s(S_3)} offen offset:{32*kp}")
    A("K1_U_IDLE:")
    A("s_barrier")
    A("s_branch K1_END")
    A("K1_U_G:")
    A(f"s_cmp_eq_u32 {s(S_W)}, 4\ns_cbranch_scc0 K1_U_G2")
    A(f"s_add_u32 {s(S_3)}, {s(S_2)}, {U_OFF}")
    for rt in range(2):
        pk = V_AF + 4 * rt
        pack8(A, pk, V_C + 16 * rt)
        if rt == 1: A(f"s_add_u32 {s(S_3)}, {s(S_3)}, {32*288}")
        A(f"buffer_store_dwordx4 {v(pk,4)}, {v(V_A0)}, {s(R_WS,4)}, {s(S_3)} offen")
    A("K1_U_G2:")
    St = G + 4
    A(f"s_sub_u32 {s(S_0)}, {s(S_W)}, 4")
    A(f"s_lshl_b32 {s(S_0)}, {s(S_0)}, 10")
    A(f"s_add_u32 {s(S_0)}, {s(S_0)}, {L_ACT2}")
    A(f"v_lshlrev_b32 {v(G)}, 3, {v(V_LANE)}")
    A(f"v_add_u32 {v(V_A1)}, {s(S_0)}, {v(G)}")
    for rt in range(2):
        for kp in range(2):
            c0 = V_C + 16 * rt + 8 * kp
            o = St + 2 * (2 * rt + kp)
            tm = St + 8
            A(f"v_add_f32 {v(o)}, {v(c0)}, {v(c0+1)}")
            for i in range(2, 8): A(f"v_add_f32 {v(o)}, {v(o)}, {v(c0+i)}")
            A(f"v_mul_f32 {v(tm)}, {f32(0.125)}, {v(o)}")
            for i in range(8): A(f"v_sub_f32 {v(tm+1+i)}, {v(c0+i)}, {v(tm)}")
            A(f"v_mul_f32 {v(o+1)}, {v(tm+1)}, {v(tm+1)}")
            for i in range(1, 8): A(f"v_fmac_f32 {v(o+1)}, {v(tm+1+i)}, {v(tm+1+i)}")
            A(f"ds_write_b64 {v(V_A1)}, {v(o,2)} offset:{5120*rt + 512*kp}")
    A(f"v_and_b32 {v(G)}, 31, {v(V_LANE)}")
    A(f"v_lshlrev_b32 {v(G)}, 3, {v(G)}")
    A(f"v_add_u32 {v(V_A1)}, {L_ACT2 + 512}, {v(G)}")
    A("s_waitcnt lgkmcnt(0)")
    A("s_barrier")
    R = G + 4
    A(f"s_add_u32 {s(S_3)}, {s(S_2)}, {G_OFF - 288}")
    for rt in range(2):
        for j in range(18):
            if j == 12: A("s_waitcnt lgkmcnt(4)")
            A(f"ds_read_b64 {v(R+2*j,2)}, {v(V_A1)} offset:{5120*rt + 256*j}")
        A("s_waitcnt lgkmcnt(0)")
        m = G; q = G + 1; tt = G + 2
        A(f"v_add_f32 {v(m)}, {v(R)}, {v(R+2)}")
        A(f"v_add_f32 {v(q)}, {v(R+1)}, {v(R+3)}")
        for j in range(2, 18):
            A(f"v_add_f32 {v(m)}, {v(m)}, {v(R+2*j)}")
            A(f"v_add_f32 {v(q)}, {v(q)}, {v(R+2*j+1)}")
        A(f"v_mul_f32 {v(m)}, {f32(1.0/144)}, {v(m)}")
        A(f"v_mul_f32 {v(tt)}, {f32(8.0)}, {v(m)}")
        for j in range(18): A(f"v_sub_f32 {v(R+2*j)}, {v(R+2*j)}, {v(tt)}")
        A(f"v_mul_f32 {v(tt)}, {v(R)}, {v(R)}")
        for j in range(1, 18): A(f"v_fmac_f32 {v(tt)}, {v(R+2*j)}, {v(R+2*j)}")
        A(f"v_fmac_f32 {v(q)}, {f32(0.125)}, {v(tt)}")
        A(f"v_mov_b32 {v(tt)}, {f32(1e-5)}")
        A(f"v_fmac_f32 {v(tt)}, {f32(1.0/144)}, {v(q)}")
        A(f"v_rsq_f32 {v(tt)}, {v(tt)}")
        for i in range(16): A(f"v_sub_f32 {v(V_C+16*rt+i)}, {v(V_C+16*rt+i)}, {v(m)}")
        for i in range(16): A(f"v_mul_f32 {v(V_C+16*rt+i)}, {v(V_C+16*rt+i)}, {v(tt)}")
        pk = V_AF + 8 + 8 * rt
        pack8(A, pk, V_C + 16 * rt); pack8(A, pk + 4, V_C + 16 * rt + 8)
        if rt == 1: A(f"s_add_u32 {s(S_3)}, {s(S_3)}, {32*288}")
        lab = f"K1_U_S{rt}"
        A(f"s_cmp_eq_u32 {s(S_W)}, 4\ns_cbranch_scc1 {lab}")
        A(f"buffer_store_dwordx4 {v(pk,4)}, {v(V_A0)}, {s(R_WS,4)}, {s(S_3)} offen")
        A(f"{lab}:")
        A(f"buffer_store_dwordx4 {v(pk+4,4)}, {v(V_A0)}, {s(R_WS,4)}, {s(S_3)} offen offset:32")
    A("s_branch K1_END")
    A("K1_WTYPE:")
    A(f"s_sub_u32 {s(S_RB)}, {s(S_RB)}, 125")
    srd(A, R_C, S_WM, 82944)
    pi_row(A, V_T+8, V_T+9, V_T+10)
    A(f"v_mul_u32_u24 {v(V_T+8)}, 288, {v(V_T+8)}")
    A(f"v_lshrrev_b32 {v(V_T+9)}, 5, {v(V_LANE)}")
    A(f"v_lshl_add_u32 {v(V_A2)}, {v(V_T+9)}, 4, {v(V_T+8)}")
    A(f"s_lshl_b32 {s(S_3)}, {s(S_RB)}, 1")
    A(f"s_add_u32 {s(S_3)}, {s(S_3)}, {s(S_RT)}")
    A(f"s_mul_i32 {s(S_1)}, {s(S_3)}, {32*288}")
    A(f"s_mul_i32 {s(S_0)}, {s(S_RT)}, 9216")
    A(f"v_add_u32 {v(V_A3)}, {s(S_0)}, {v(V_L16)}")
    A(f"s_cmp_eq_u32 {s(S_2)}, 1\ns_cbranch_scc1 K1_W_DN")
    srd(A, R_A, S_WV, 41472)
    srd(A, R_B, S_WAO, 41472)
    for k in range(9):
        A(f"buffer_load_dwordx4 {v(V_B+4*k,4)}, {v(V_A2)}, {s(R_A,4)}, {s(S_1)} offen offset:{32*k}")
    dma_mat(A, R_B, 0, 41472, L_WA, "wa")
    dma_mat(A, R_C, 0, 41472, L_WB, "wb")
    A(f"s_lshl_b32 {s(S_0)}, {s(S_T)}, 6")
    A(f"s_add_u32 {s(S_0)}, {s(S_0)}, {L_WA}")
    tr_base(A, V_TR, 288, S_0)
    A("s_waitcnt vmcnt(0)")
    A("s_barrier")
    gemm_tr(A, 288, V_TR, None, [V_B], [V_C])
    pack8(A, V_AF, V_C); pack8(A, V_AF+4, V_C+8)
    A(f"s_lshl_b32 {s(S_0)}, {s(S_T)}, 11")
    A(f"v_add_u32 {v(V_A1)}, {s(S_0)}, {v(V_A3)}")
    A(f"v_add_u32 {v(V_A1)}, {L_ACT2}, {v(V_A1)}")
    A(f"ds_write_b128 {v(V_A1)}, {v(V_AF,4)}")
    A(f"s_cmp_eq_u32 {s(S_T)}, 4\ns_cbranch_scc1 K1_W_W1")
    A(f"ds_write_b128 {v(V_A1)}, {v(V_AF+4,4)} offset:1024")
    A("K1_W_W1:")
    A(f"v_add_u32 {v(V_A1)}, {L_ACT2}, {v(V_A3)}")
    A("s_waitcnt lgkmcnt(0)")
    A("s_barrier")
    read_bfrags(A, V_B, V_A1, 0)
    A("s_waitcnt lgkmcnt(0)")
    A(f"s_mov_b32 {s(S_2)}, 0")
    A("s_branch K1_W_FIN")
    A("K1_W_DN:")
    srd(A, R_A, S_WDN, 41472)
    for k in range(9):
        A(f"buffer_load_dwordx4 {v(V_B+4*k,4)}, {v(V_A2)}, {s(R_A,4)}, {s(S_1)} offen offset:{32*k}")
    dma_mat(A, R_C, 41472, 41472, L_WB, "wc")
    A(f"s_lshl_b32 {s(S_0)}, {s(S_T)}, 6")
    A(f"s_add_u32 {s(S_0)}, {s(S_0)}, {L_WA}")
    tr_base(A, V_TR, 288, S_0)
    A("s_waitcnt vmcnt(0)")
    A("s_barrier")
    A(f"s_mov_b32 {s(S_2)}, 9")
    A("K1_W_FIN:")
    A(f"v_add_u32 {v(V_TR)}, {L_WB - L_WA}, {v(V_TR)}")
    gemm_tr(A, 288, V_TR, None, [V_B], [V_C], swapped=True)
    pack8(A, V_AF, V_C); pack8(A, V_AF+4, V_C+8)
    A(f"s_lshl_b32 {s(S_0)}, {s(S_3)}, 1")
    A(f"s_cmp_ge_u32 {s(S_0)}, 9\ns_cbranch_scc1 K1_END")
    A(f"s_add_u32 {s(S_1)}, {s(S_0)}, {s(S_2)}")
    A(f"s_mul_i32 {s(S_2)}, {s(S_T)}, 18")
    A(f"s_add_u32 {s(S_1)}, {s(S_1)}, {s(S_2)}")
    A(f"s_lshl_b32 {s(S_1)}, {s(S_1)}, 10")
    A(f"s_add_u32 {s(S_1)}, {s(S_1)}, {WF_OFF}")
    A(f"buffer_store_dwordx4 {v(V_AF,4)}, {v(V_L16)}, {s(R_WS,4)}, {s(S_1)} offen")
    A(f"s_cmp_eq_u32 {s(S_0)}, 8\ns_cbranch_scc1 K1_END")
    A(f"buffer_store_dwordx4 {v(V_AF+4,4)}, {v(V_L16)}, {s(R_WS,4)}, {s(S_1)} offen offset:1024")
    A("K1_END:")
    A("s_endpgm")
    return A.L

K1_LAUNCH = f"; @launch kernel=k1_kernel grid=(256,1,1) block=(640,1,1) lds={K1_LDS}"
def k1_desc(): return kernel_desc("k1_kernel", NV1, NV1)

if __name__ == '__main__':
    import sys
    L, n = fix_hazards(gen_k1(), verbose=False)
    out = [K1_LAUNCH, '.amdgcn_target "amdgcn-amd-amdhsa--gfx950"', '.text'] + L + ['.section .rodata,"a"', k1_desc()]
    open(sys.argv[1] if len(sys.argv) > 1 else 'k1_only.s', 'w').write("\n".join(out) + "\n")
    print('nops inserted', n, 'lines', len(L))
```

```python
from asmlib import *
from layout import *

V_LANE = 1
V_KB, V_VB0, V_VB1, V_VLB = 2, 3, 4, 5
V_K, V_V0, V_V1, V_VL = 6, 7, 8, 9
V_DMA = 10
V_L = [11, 12]
V_M = 13; V_LF = 14; V_X = 15
V_S = [16, 32]
V_NM = 48
V_P = 64
V_T = 72
V_E = 80
NV = 88
A_O = 0
A_OX = 64; A_OY = 68
A_Q = 72
A_F = 108
NA = 144
S_WS = 4
S_SRD = 8
S_QI, S_KH, S_NT, S_GQ, S_SPLIT, S_VALID = 12, 13, 14, 15, 16, 17
S_SRC = 18
S_SRC2 = 19
S_DST = 20
S_PV = 21
S_PK = 22
S_N = 23
S_LB = 24
S_T0, S_T1, S_T2, S_T3 = 25, 26, 27, 28
S_THR = 29
HALF = 8 * TILE
LDS_BYTES = 2 * HALF
D_LOOK = 5

def frag(i): return A_F + 4 * i

def k_reads(sidx, toff):
    return [f"ds_read_b128 {a(frag(sidx),4)}, {v(V_K)} offset:{toff + 32*sidx}"]
def v_reads(f, toff):
    if f < 8:
        kap, t = f // 4, f % 4
        reg = V_V0 if kap == 0 else V_V1
        return [f"ds_read_b64_tr_b16 {a(frag(f)+2*rho,2)}, {v(reg)} offset:{toff + 2304*(2*kap+rho) + 64*t}" for rho in (0, 1)]
    return [f"ds_read_b64_tr_b16 {a(frag(8)+2*rho,2)}, {v(V_VL)} offset:{toff + 2304*rho}" for rho in (0, 1)]

def qk_mfma(sidx, par, first_c=None):
    S = V_S[par]
    c = v(S, 16) if sidx else (first_c if first_c is not None else v(V_NM, 16))
    return [f"v_mfma_f32_32x32x16_bf16 {v(S,16)}, {a(frag(sidx),4)}, {a(A_Q+4*sidx,4)}, {c}"]
def pv_mfma(f):
    if f < 8:
        kap, t = f // 4, f % 4
        return [f"v_mfma_f32_32x32x16_bf16 {a(A_O+16*t,16)}, {a(frag(f),4)}, {v(V_P+4*kap,4)}, {a(A_O+16*t,16)}"]
    return [f"v_permlane16_swap_b32 {v(V_P+i)}, {v(V_P+4+i)}" for i in range(4)] + \
           [f"v_mfma_f32_16x16x32_bf16 {a(A_OX,4)}, {a(frag(8),4)}, {v(V_P,4)}, {a(A_OX,4)}",
            f"v_mfma_f32_16x16x32_bf16 {a(A_OY,4)}, {a(frag(8),4)}, {v(V_P+4,4)}, {a(A_OY,4)}"]

def sm_groups(par):
    S = V_S[par]; Lo = V_L[par]; Ln = V_L[par ^ 1]
    G = []
    for g in range(8):
        t0 = V_T + (2 * g) % 8; t1 = t0 + 1
        ins = [f"v_exp_f32 {v(t0)}, {v(S+2*g)}", f"v_exp_f32 {v(t1)}, {v(S+2*g+1)}",
               f"v_add_f32 {v(Ln)}, {v(Lo if g == 0 else Ln)}, {v(t0)}",
               f"v_cvt_pk_bf16_f32 {v(V_P+g)}, {v(t0)}, {v(t1)}",
               f"v_add_f32 {v(Ln)}, {v(Ln)}, {v(t1)}"]
        G.append(ins)
    return G

class Stream:
    def __init__(self, A):
        self.A = A
        self.pending = []
    def issue(self, tag, reads):
        for r in reads: self.A(r)
        self.pending.append((tag, len(reads)))
    def wait_for(self, tag):
        idx = [i for i, (t, n) in enumerate(self.pending) if t == tag]
        if not idx: return
        i = idx[-1]
        after = sum(n for t, n in self.pending[i+1:])
        self.A(f"s_waitcnt lgkmcnt({after})")
        self.pending = self.pending[i+1:]

def emit_seq(A, st, groups, lookahead_next, fillers):
    allg = groups + lookahead_next
    for n, (tag, mf, rd, pre) in enumerate(groups):
        for f in fillers.get(('pre', n), []): A(f)
        st.wait_for(tag)
        for m in mf: A(m)
        if n + D_LOOK < len(allg):
            t2, _, rd2, pre2 = allg[n + D_LOOK]
            for p in pre2: A(p)
            st.issue(t2, rd2)
        for f in fillers.get(n, []): A(f)

def qk_group(j, par, toff, pre=None, first_c=None):
    return [(('K', j, s_), qk_mfma(s_, par, first_c), k_reads(s_, toff), (pre if s_ == 0 and pre else [])) for s_ in range(9)]
def pv_group(j, toff, pre=None):
    return [(('V', j, f), pv_mfma(f), v_reads(f, toff), (pre if f == 0 and pre else [])) for f in range(9)]

def upd_k(): return [f"v_add_u32 {v(V_K)}, {s(S_PK)}, {v(V_KB)}"]
def upd_v(): return [f"v_add_u32 {v(V_V0)}, {s(S_PV)}, {v(V_VB0)}", f"v_add_u32 {v(V_V1)}, {s(S_PV)}, {v(V_VB1)}", f"v_add_u32 {v(V_VL)}, {s(S_PV)}, {v(V_VLB)}"]

def dma_pair():
    r = [f"s_add_u32 m0, {s(S_LB)}, {s(S_DST)}",
         f"s_add_u32 {s(S_SRC2)}, {s(S_SRC)}, 4096"]
    P = []
    for k in range(4):
        P.append([f"buffer_load_dwordx4 {v(V_DMA)}, {s(S_SRD,4)}, {s(S_SRC)} offen offset:{1024*k} lds"])
    P.append([f"s_add_u32 m0, m0, 4096", f"s_mov_b64 exec, 0xffffffff",
              f"buffer_load_dwordx4 {v(V_DMA)}, {s(S_SRD,4)}, {s(S_SRC2)} offen lds", f"s_mov_b64 exec, -1",
              f"s_add_u32 {s(S_SRC)}, {s(S_SRC)}, {2*TILE}",
              f"s_add_u32 {s(S_DST)}, {s(S_DST)}, {2*TILE}",
              f"s_cmp_ge_u32 {s(S_DST)}, {HALF}",
              f"s_cselect_b32 {s(S_DST)}, 0, {s(S_DST)}"])
    return r, P

def check(par, lab):
    Ln = V_L[par ^ 1]
    return [f"v_cmp_nle_f32 vcc, {v(Ln)}, {v(V_X)}", f"s_cbranch_vccnz {lab}", f"{lab}_ret:"]

def rare_path(A, par, lab):
    S = V_S[par]; Sn = V_S[par ^ 1]; Lo = V_L[par]
    T = V_T; E = V_E
    A(f"{lab}:")
    A("s_nop 15\ns_nop 15\ns_nop 15\ns_nop 15")
    A(f"v_max3_f32 {v(E)}, {v(S)}, {v(S+1)}, {v(S+2)}")
    for i in range(3, 15, 2): A(f"v_max3_f32 {v(E)}, {v(E)}, {v(S+i)}, {v(S+i+1)}")
    A(f"v_max_f32 {v(E)}, {v(E)}, {v(S+15)}")
    A(f"v_mov_b32 {v(E+1)}, {v(E)}")
    A(f"v_permlane32_swap_b32 {v(E)}, {v(E+1)}")
    A(f"v_max3_f32 {v(E)}, {v(E)}, {v(E+1)}, 0")
    A(f"v_sub_f32 {v(E+1)}, 0, {v(E)}")
    A(f"v_exp_f32 {v(E+1)}, {v(E+1)}")
    A(f"v_mov_b32 {v(E+2)}, {v(E+1)}")
    A(f"v_mov_b32 {v(E+3)}, {v(E+1)}")
    A(f"v_permlane16_swap_b32 {v(E+2)}, {v(E+3)}")
    for i in range(72):
        fr = E + 1 if i < 64 else (E + 2 if i < 68 else E + 3)
        t = T + i % 8
        A(f"v_accvgpr_read_b32 {v(t)}, {a(A_O+i)}")
        A(f"v_mul_f32 {v(t)}, {v(t)}, {v(fr)}")
        A(f"v_accvgpr_write_b32 {a(A_O+i)}, {v(t)}")
    A(f"v_mul_f32 {v(Lo)}, {v(Lo)}, {v(E+1)}")
    for i in range(16):
        A(f"v_sub_f32 {v(V_NM+i)}, {v(V_NM+i)}, {v(E)}")
        A(f"v_sub_f32 {v(S+i)}, {v(S+i)}, {v(E)}")
        A(f"v_sub_f32 {v(Sn+i)}, {v(Sn+i)}, {v(E)}")
    for g in sm_groups(par):
        for i in g: A(i)
    A("s_nop 7")
    A(f"s_branch {lab}_ret")

STAMPS = False
def stamp(A, i):
    if STAMPS:
        A(f"s_memtime {s(40+2*i,2)}")
        A(f"s_memrealtime {s(70+2*i,2)}")
        A("s_waitcnt lgkmcnt(0)")
def dump_stamps(A, n):
    if not STAMPS: return
    A("s_load_dwordx2 s[60:61], s[0:1], 80")
    A("s_waitcnt lgkmcnt(0)")
    A("s_mov_b32 s64, s60\ns_and_b32 s65, s61, 0xffff\ns_mov_b32 s66, 256\ns_mov_b32 s67, 0x00020000")
    A("s_cmp_eq_u32 s2, 77\ns_cbranch_scc0 K2_NOST")
    A(f"s_lshl_b32 s62, {s(S_KH)}, 2\ns_add_u32 s62, s62, {s(S_QI)}\ns_lshl_b32 s62, s62, 5")
    A("v_mov_b32 v2, 0")
    for i in range(1, n):
        A(f"s_sub_u32 s63, {s(40+2*i)}, s40")
        A(f"s_sub_u32 s68, {s(70+2*i)}, s70")
        A(f"s_lshl_b32 s68, s68, 20")
        A(f"s_or_b32 s63, s63, s68")
        A(f"v_mov_b32 v3, s63")
        A(f"buffer_store_dword v3, v2, s[64:67], s62 offen offset:{4*(i-1)}")
    A("K2_NOST:")

def gen_k2(name="k2_kernel", epilogue=True):
    A = Asm()
    A(kernel_header(name))
    A(f"s_cmp_ge_u32 s2, 256\ns_cbranch_scc1 K2_END")
    stamp(A, 0)
    A(f"s_load_dwordx2 {s(S_WS,2)}, s[0:1], 88")
    A(f"v_lshrrev_b32 {v(2)}, 6, v0")
    A(f"v_and_b32 {v(V_LANE)}, 63, v0")
    A(f"v_readfirstlane_b32 {s(S_T0)}, {v(2)}")
    A(f"s_and_b32 {s(S_T1)}, s2, 7")
    A(f"s_lshr_b32 {s(S_T2)}, s2, 3")
    A(f"s_and_b32 {s(S_SPLIT)}, {s(S_T2)}, 3")
    A(f"s_lshr_b32 {s(S_T2)}, {s(S_T2)}, 2")
    A(f"s_lshl_b32 {s(S_T3)}, {s(S_T1)}, 3")
    A(f"s_add_u32 {s(S_T2)}, {s(S_T2)}, {s(S_T3)}")
    A(f"s_lshr_b32 {s(S_T1)}, {s(S_T2)}, 5")
    A(f"s_and_b32 {s(S_T2)}, {s(S_T2)}, 31")
    A(f"s_and_b32 {s(S_QI)}, {s(S_T0)}, 3")
    A(f"s_lshr_b32 {s(S_KH)}, {s(S_T0)}, 2")
    A(f"s_lshl_b32 {s(S_T2)}, {s(S_T2)}, 2")
    A(f"s_add_u32 {s(S_T2)}, {s(S_T2)}, {s(S_QI)}")
    A(f"s_cmp_lt_u32 {s(S_T2)}, 125")
    A(f"s_cselect_b32 {s(S_VALID)}, 1, 0")
    A(f"s_min_u32 {s(S_T2)}, {s(S_T2)}, 124")
    A(f"s_mul_i32 {s(S_T1)}, {s(S_T1)}, 125")
    A(f"s_add_u32 {s(S_GQ)}, {s(S_T1)}, {s(S_T2)}")
    A(f"s_lshl_b32 {s(S_T2)}, {s(S_SPLIT)}, 1")
    A(f"s_add_u32 {s(S_T2)}, {s(S_T2)}, {s(S_KH)}")
    A(f"s_cmp_lt_u32 {s(S_T2)}, 5")
    A(f"s_cselect_b32 {s(S_NT)}, 16, 15")
    A(f"s_max_u32 {s(S_T3)}, {s(S_T2)}, 5")
    A(f"s_sub_u32 {s(S_T3)}, {s(S_T3)}, 5")
    A(f"s_lshl_b32 {s(S_T2)}, {s(S_T2)}, 4")
    A(f"s_sub_u32 {s(S_T2)}, {s(S_T2)}, {s(S_T3)}")
    A(f"s_add_u32 {s(S_T2)}, {s(S_T2)}, {s(S_T1)}")
    A(f"s_mul_i32 {s(S_SRC)}, {s(S_T2)}, {TILE}")
    A(f"s_add_u32 {s(S_SRC)}, {s(S_SRC)}, {XA_OFF}")
    A(f"s_mul_i32 {s(S_T3)}, {s(S_KH)}, {HALF}")
    A(f"s_mul_i32 {s(S_T1)}, {s(S_QI)}, 4608")
    A(f"s_add_u32 {s(S_LB)}, {s(S_T3)}, {s(S_T1)}")
    A(f"v_lshlrev_b32 {v(V_E)}, 4, {v(V_LANE)}")
    A(f"v_add_u32 {v(V_DMA)}, {s(S_T1)}, {v(V_E)}")
    A(f"s_mul_i32 {s(S_T1)}, {s(S_QI)}, 2304")
    A(f"v_add_u32 {v(V_E+1)}, {s(S_T1)}, {v(V_E)}")
    A(f"s_add_u32 {s(S_T1)}, {s(S_T1)}, {s(S_T3)}")
    A(f"s_add_u32 m0, {s(S_T1)}, {7*TILE}")
    A(f"s_waitcnt lgkmcnt(0)")
    A(f"s_mov_b32 {s(S_SRD)}, {s(S_WS)}\ns_and_b32 {s(S_SRD+1)}, {s(S_WS+1)}, 0xffff\ns_mov_b32 {s(S_SRD+2)}, {WS_SIZE}\ns_mov_b32 {s(S_SRD+3)}, 0x00020000")
    A(f"buffer_load_dwordx4 {v(V_E+1)}, {s(S_SRD,4)}, {s(S_SRC)} offen lds")
    A(f"buffer_load_dwordx4 {v(V_E+1)}, {s(S_SRD,4)}, {s(S_SRC)} offen offset:1024 lds")
    A(f"s_mov_b64 exec, 0xffff")
    A(f"buffer_load_dwordx4 {v(V_E+1)}, {s(S_SRD,4)}, {s(S_SRC)} offen offset:2048 lds")
    A(f"s_mov_b64 exec, -1")
    A(f"s_mul_i32 {s(S_T1)}, {s(S_GQ)}, {TILE}")
    A(f"s_add_u32 {s(S_T1)}, {s(S_T1)}, {QP_OFF}")
    for k in range(9):
        if k in (4, 8): A(f"s_add_u32 {s(S_T1)}, {s(S_T1)}, 4096")
        A(f"buffer_load_dwordx4 {a(A_Q+4*k,4)}, {v(V_E)}, {s(S_SRD,4)}, {s(S_T1)} offen offset:{1024*(k%4)}")
    A(f"s_add_u32 {s(S_SRC)}, {s(S_SRC)}, {TILE}")
    A(f"s_mov_b32 {s(S_DST)}, 0")
    for _ in range(3):
        r, P = dma_pair()
        A.extend(r)
        for p in P: A.extend(p)
    L = V_LANE; t = V_T
    A(f"v_bfe_u32 {v(t)}, {v(L)}, 3, 2")
    A(f"v_bfe_u32 {v(t+1)}, {v(L)}, 2, 1")
    A(f"v_and_b32 {v(t+2)}, 3, {v(L)}")
    A(f"v_lshrrev_b32 {v(t+3)}, 5, {v(L)}")
    A(f"v_lshrrev_b32 {v(t+4)}, 1, {v(t)}")
    A(f"v_xor_b32 {v(t+4)}, {v(t+4)}, {v(t+3)}")
    A(f"v_mul_u32_u24 {v(t)}, 144, {v(t)}")
    A(f"v_mad_u32_u24 {v(t)}, {v(t+2)}, 36, {v(t)}")
    A(f"v_mad_u32_u24 {v(t)}, {v(t+1)}, 18, {v(t)}")
    A(f"v_add_u32 {v(t)}, {v(t)}, {v(t+4)}")
    A(f"v_lshlrev_b32 {v(t)}, 4, {v(t)}")
    A(f"v_add_u32 {v(V_KB)}, {s(S_T3)}, {v(t)}")
    A(f"v_bfe_u32 {v(t)}, {v(L)}, 4, 1")
    A(f"v_bfe_u32 {v(t+1)}, {v(L)}, 2, 2")
    A(f"v_and_b32 {v(t+2)}, 1, {v(L)}")
    A(f"v_bfe_u32 {v(t+4)}, {v(L)}, 1, 1")
    A(f"v_mul_u32_u24 {v(t+5)}, 36, {v(t+1)}")
    A(f"v_mad_u32_u24 {v(t+5)}, {v(t+3)}, 18, {v(t+5)}")
    A(f"v_lshl_add_u32 {v(t+6)}, {v(t)}, 1, {v(t+5)}")
    A(f"v_add_u32 {v(t+7)}, {v(t+6)}, {v(t+2)}")
    A(f"v_lshlrev_b32 {v(t+7)}, 4, {v(t+7)}")
    A(f"v_lshl_add_u32 {v(t+7)}, {v(t+4)}, 3, {v(t+7)}")
    A(f"v_add_u32 {v(V_VB0)}, {s(S_T3)}, {v(t+7)}")
    A(f"v_xor_b32 {v(t+7)}, 1, {v(t+2)}")
    A(f"v_add_u32 {v(t+7)}, {v(t+6)}, {v(t+7)}")
    A(f"v_lshlrev_b32 {v(t+7)}, 4, {v(t+7)}")
    A(f"v_lshl_add_u32 {v(t+7)}, {v(t+4)}, 3, {v(t+7)}")
    A(f"v_add_u32 {v(V_VB1)}, {s(S_T3)}, {v(t+7)}")
    A(f"v_xor_b32 {v(t+7)}, {v(t+4)}, {v(t)}")
    A(f"v_add3_u32 {v(t+7)}, {v(t+7)}, {v(t+5)}, 16")
    A(f"v_mul_u32_u24 {v(t+6)}, 288, {v(t)}")
    A(f"v_add_u32 {v(t+7)}, {v(t+7)}, {v(t+6)}")
    A(f"v_lshlrev_b32 {v(t+7)}, 4, {v(t+7)}")
    A(f"v_lshl_add_u32 {v(t+7)}, {v(t+2)}, 3, {v(t+7)}")
    A(f"v_add_u32 {v(V_VLB)}, {s(S_T3)}, {v(t+7)}")
    for i in range(72): A(f"v_accvgpr_write_b32 {a(A_O+i)}, 0")
    A(f"v_mov_b32 {v(V_L[0])}, 0")
    A(f"v_mov_b32 {v(V_X)}, 0x5f800000")
    A(f"s_mov_b32 {s(S_PV)}, {6*TILE}")
    A(f"s_mov_b32 {s(S_PK)}, {6*TILE}")
    A.extend(upd_k()); A.extend(upd_v())
    A(f"s_mov_b32 {s(S_PK)}, 0")
    stamp(A, 1)
    A(f"s_waitcnt vmcnt(10)")
    A(f"s_barrier")
    stamp(A, 2)
    st = Stream(A)
    g_qk0 = qk_group(0, 0, TILE, first_c="0")
    g_qk1 = qk_group(1, 1, 0, pre=upd_k())
    g_pv0 = pv_group(0, TILE)
    g_body_start = qk_group(2, 0, TILE)
    for n in range(D_LOOK): st.issue(g_qk0[n][0], g_qk0[n][2])
    emit_seq(A, st, g_qk0, g_qk1, {})
    S = V_S[0]; E = V_E
    A(f"v_max3_f32 {v(E)}, {v(S)}, {v(S+1)}, {v(S+2)}")
    for i in range(3, 15, 2): A(f"v_max3_f32 {v(E)}, {v(E)}, {v(S+i)}, {v(S+i+1)}")
    A(f"v_max_f32 {v(E)}, {v(E)}, {v(S+15)}")
    A(f"v_mov_b32 {v(E+1)}, {v(E)}")
    A(f"v_permlane32_swap_b32 {v(E)}, {v(E+1)}")
    A(f"v_max_f32 {v(E)}, {v(E)}, {v(E+1)}")
    for i in range(16): A(f"v_sub_f32 {v(V_NM+i)}, 0, {v(E)}")
    for i in range(16): A(f"v_sub_f32 {v(S+i)}, {v(S+i)}, {v(E)}")
    smf = lambda par: {i: g for i, g in enumerate(sm_groups(par))}
    emit_seq(A, st, g_qk1 + g_pv0, g_body_start, smf(0))
    A(f"s_mov_b32 {s(S_N)}, 0")
    A(f"s_mov_b32 {s(S_PV)}, 0")
    A(f"s_mov_b32 {s(S_PK)}, {2*TILE}")
    pend_at_top = list(st.pending)
    stamp(A, 3)
    A("K2_LOOP:")
    A(f"s_waitcnt vmcnt(5)")
    A(f"s_barrier")
    gA = qk_group(2, 0, TILE)
    gB = pv_group(1, 0, pre=upd_v())
    gC = qk_group(3, 1, 0, pre=upd_k())
    gD = pv_group(2, TILE)
    gN = qk_group(2, 0, TILE)
    fl = {}
    for i, g in enumerate(sm_groups(1)): fl[i] = list(g)
    fl[('pre', 9)] = check(1, "K2_RARE_A")
    for i, g in enumerate(sm_groups(0)): fl[18 + i] = list(g)
    fl[('pre', 27)] = check(0, "K2_RARE_B")
    r, P = dma_pair()
    fl[9] = r + P[0]
    for k in range(1, 5): fl[9 + k] = P[k]
    fl[30] = [f"s_mov_b32 {s(S_PV)}, {s(S_PK)}",
              f"s_add_u32 {s(S_PK)}, {s(S_PK)}, {2*TILE}",
              f"s_cmp_ge_u32 {s(S_PK)}, {HALF}",
              f"s_cselect_b32 {s(S_PK)}, 0, {s(S_PK)}",
              f"s_add_u32 {s(S_N)}, {s(S_N)}, 1"]
    emit_seq(A, st, gA + gB + gC + gD, gN, fl)
    assert [n for _, n in st.pending] == [n for _, n in pend_at_top], (st.pending, pend_at_top)
    A(f"s_cmp_lt_u32 {s(S_N)}, 7")
    A(f"s_cbranch_scc1 K2_LOOP")
    stamp(A, 4)
    A(f"v_mov_b32 {v(V_LF)}, {v(V_L[1])}")
    A(f"s_cmp_eq_u32 {s(S_NT)}, 16")
    A(f"s_cbranch_scc0 K2_EPI")
    st.pending = []
    A(f"s_waitcnt lgkmcnt(0)")
    A.extend(upd_v())
    gT = pv_group(15, 0)
    for n in range(7): st.issue(gT[n][0], gT[n][2])
    for g in sm_groups(1): A.extend(g)
    A.extend(check(1, "K2_RARE_T"))
    for n, (tag, mf, rd, pre) in enumerate(gT):
        st.wait_for(tag)
        A.extend(mf)
        if n + 7 < 9: st.issue(gT[n+7][0], gT[n+7][2])
    A(f"v_mov_b32 {v(V_LF)}, {v(V_L[0])}")
    A("K2_EPI:")
    stamp(A, 5)
    if epilogue:
        gen_epilogue(A)
    A("K2_END2:")
    stamp(A, 6)
    if STAMPS: A("s_waitcnt vmcnt(0)")
    stamp(A, 7)
    dump_stamps(A, 8)
    A("K2_END:")
    A("s_endpgm")
    rare_path(A, 1, "K2_RARE_A")
    rare_path(A, 0, "K2_RARE_B")
    rare_path(A, 1, "K2_RARE_T")
    return A.L

XCH = 10240
def gen_epilogue(A):
    E = V_E; T = V_T
    A(f"v_mov_b32 {v(E)}, {v(V_LF)}")
    A(f"v_sub_f32 {v(V_M)}, 0, {v(V_NM)}")
    A(f"v_permlane32_swap_b32 {v(E)}, {v(V_LF)}")
    A(f"v_add_f32 {v(V_LF)}, {v(V_LF)}, {v(E)}")
    A(f"v_mov_b32 {v(E)}, {v(V_M)}")
    A(f"v_mov_b32 {v(E+1)}, {v(V_LF)}")
    A(f"s_lshl_b32 {s(S_T0)}, {s(S_KH)}, 2")
    A(f"s_add_u32 {s(S_T0)}, {s(S_T0)}, {s(S_QI)}")
    A(f"s_xor_b32 {s(S_T1)}, {s(S_T0)}, 4")
    A(f"s_mul_i32 {s(S_T0)}, {s(S_T0)}, {XCH}")
    A(f"s_mul_i32 {s(S_T1)}, {s(S_T1)}, {XCH}")
    A(f"v_lshlrev_b32 {v(E+2)}, 4, {v(V_LANE)}")
    A(f"v_add_u32 {v(E+3)}, {s(S_T0)}, {v(E+2)}")
    A(f"v_add_u32 {v(E+4)}, {s(S_T1)}, {v(E+2)}")
    A(f"s_waitcnt vmcnt(0) lgkmcnt(0)")
    A(f"s_barrier")
    A(f"ds_write_b64 {v(E+3)}, {v(E,2)} offset:9216")
    A(f"s_cmp_eq_u32 {s(S_KH)}, 0")
    A(f"s_cbranch_scc0 K2_EPI1")
    for kh in (0, 1):
        if kh == 1: A("K2_EPI1:")
        keep_t = (0, 1) if kh == 0 else (2, 3)
        send_t = (2, 3) if kh == 0 else (0, 1)
        keep_s = A_OX if kh == 0 else A_OY
        send_s = A_OY if kh == 0 else A_OX
        q = 0
        for t in send_t:
            for i in range(4):
                A(f"ds_write_b128 {v(E+3)}, {a(A_O+16*t+4*i,4)} offset:{1024*q}"); q += 1
        A(f"ds_write_b128 {v(E+3)}, {a(send_s,4)} offset:{1024*q}")
        A(f"s_waitcnt lgkmcnt(0)")
        A(f"s_barrier")
        R = 16
        A(f"ds_read_b64 {v(E+6,2)}, {v(E+4)} offset:9216")
        for q in range(9):
            A(f"ds_read_b128 {v(R+4*q,4)}, {v(E+4)} offset:{1024*q}")
        A(f"s_waitcnt lgkmcnt(9)")
        A(f"v_max_f32 {v(T)}, {v(E)}, {v(E+6)}")
        A(f"v_sub_f32 {v(T+2)}, {v(E)}, {v(T)}")
        A(f"v_sub_f32 {v(T+3)}, {v(E+6)}, {v(T)}")
        A(f"v_exp_f32 {v(T+2)}, {v(T+2)}")
        A(f"v_exp_f32 {v(T+3)}, {v(T+3)}")
        A(f"v_mul_f32 {v(T+1)}, {v(E+1)}, {v(T+2)}")
        A(f"v_fmac_f32 {v(T+1)}, {v(E+7)}, {v(T+3)}")
        A(f"v_rcp_f32 {v(T+4)}, {v(T+1)}")
        A(f"v_mul_f32 {v(T+2)}, {v(T+2)}, {v(T+4)}")
        A(f"v_mul_f32 {v(T+3)}, {v(T+3)}, {v(T+4)}")
        A(f"v_mov_b32 {v(T+4)}, {v(T+2)}\nv_mov_b32 {v(T+5)}, {v(T+2)}\nv_mov_b32 {v(T+6)}, {v(T+3)}\nv_mov_b32 {v(T+7)}, {v(T+3)}")
        A(f"v_permlane16_swap_b32 {v(T+4)}, {v(T+5)}")
        A(f"v_permlane16_swap_b32 {v(T+6)}, {v(T+7)}")
        fa, fb = (T + 4, T + 6) if kh == 0 else (T + 5, T + 7)
        A(f"s_lshl_b32 {s(S_T2)}, {s(S_GQ)}, 2")
        A(f"s_add_u32 {s(S_T2)}, {s(S_T2)}, {s(S_SPLIT)}")
        A(f"s_mul_i32 {s(S_T3)}, {s(S_T2)}, {TILE}")
        A(f"s_add_u32 {s(S_T3)}, {s(S_T3)}, {PART_OFF + 4096*kh}")
        A(f"s_lshl_b32 {s(S_T2)}, {s(S_T2)}, 8")
        A(f"s_add_u32 {s(S_T2)}, {s(S_T2)}, {ML_OFF}")
        A(f"s_cmp_eq_u32 {s(S_VALID)}, 0")
        A(f"s_cbranch_scc1 K2_END2")
        W = 52
        for u in range(4):
            A(f"s_waitcnt lgkmcnt({max(0, 7-2*u)})")
            t = keep_t[u // 2]
            for i in range(8):
                ar = A_O + 16 * t + 8 * (u % 2) + i
                A(f"v_accvgpr_read_b32 {v(W+i)}, {a(ar)}")
            for i in range(8):
                A(f"v_mul_f32 {v(W+i)}, {v(W+i)}, {v(T+2)}")
            for i in range(8):
                A(f"v_fmac_f32 {v(W+i)}, {v(R+8*u+i)}, {v(T+3)}")
            pk = V_P + 4 * (u % 2)
            for i in range(4):
                A(f"v_cvt_pk_bf16_f32 {v(pk+i)}, {v(W+2*i)}, {v(W+2*i+1)}")
            A(f"buffer_store_dwordx4 {v(pk,4)}, {v(E+2)}, {s(S_SRD,4)}, {s(S_T3)} offen offset:{1024*u}")
        A(f"s_waitcnt lgkmcnt(0)")
        for i in range(4): A(f"v_accvgpr_read_b32 {v(W+i)}, {a(keep_s+i)}")
        for i in range(4): A(f"v_mul_f32 {v(W+i)}, {v(W+i)}, {v(fa)}")
        for i in range(4): A(f"v_fmac_f32 {v(W+i)}, {v(R+32+i)}, {v(fb)}")
        A(f"v_cvt_pk_bf16_f32 {v(W+4)}, {v(W)}, {v(W+1)}")
        A(f"v_cvt_pk_bf16_f32 {v(W+5)}, {v(W+2)}, {v(W+3)}")
        A(f"v_and_b32 {v(W+6)}, 15, {v(V_LANE)}")
        A(f"v_lshrrev_b32 {v(W+7)}, 5, {v(V_LANE)}")
        A(f"v_lshl_add_u32 {v(W+6)}, {v(W+7)}, 5, {v(W+6)}")
        A(f"v_lshlrev_b32 {v(W+6)}, 4, {v(W+6)}")
        A(f"v_bfe_u32 {v(W+7)}, {v(V_LANE)}, 4, 1")
        A(f"v_lshl_add_u32 {v(W+6)}, {v(W+7)}, 3, {v(W+6)}")
        A(f"s_add_u32 {s(S_T3)}, {s(S_T3)}, {8192 - 4096*kh}")
        A(f"buffer_store_dwordx2 {v(W+4,2)}, {v(W+6)}, {s(S_SRD,4)}, {s(S_T3)} offen offset:{256*kh}")
        if kh == 0:
            A(f"v_lshlrev_b32 {v(W+8)}, 3, {v(V_LANE)}")
            A(f"s_mov_b64 exec, 0xffffffff")
            A(f"buffer_store_dwordx2 {v(T,2)}, {v(W+8)}, {s(S_SRD,4)}, {s(S_T2)} offen")
            A(f"s_mov_b64 exec, -1")
            A(f"s_branch K2_END2")

K2_LAUNCH = f"; @launch kernel=k2_kernel grid=(256,1,1) block=(512,1,1) lds={LDS_BYTES}"
def k2_desc(): return kernel_desc("k2_kernel", NV + NA, NV)

if __name__ == '__main__':
    import sys
    STAMPS = len(sys.argv) > 2
    L, n = fix_hazards(gen_k2(), verbose=False)
    out = [K2_LAUNCH, '.amdgcn_target "amdgcn-amd-amdhsa--gfx950"', '.text'] + L + ['.section .rodata,"a"', k2_desc()]
    open(sys.argv[1] if len(sys.argv) > 1 else 'k2_only.s', 'w').write("\n".join(out) + "\n")
    print('nops inserted', n, 'lines', len(L))
```

```python
from asmlib import *
from layout import *
from k1 import f32, srd
S_X, S_WQ, S_WK, S_WV, S_WAO, S_WUP, S_DW, S_WDN, S_WM, S_OUT, S_DBG, S_WS = [4 + 2*i for i in range(12)]
R_WS, R_X, R_OUT, R_DW, R_G = 28, 32, 36, 40, 44
S_W, S_GQ, S_B, S_QT = 48, 49, 50, 51
S_0, S_1, S_2, S_3 = 52, 53, 54, 55
L_Y = 0
L_G = 18432
L_UC = 36864
K3_LDS = L_UC + 32 * 304
V_LANE, V_L16, V_A0, V_A1, V_A2, V_A3 = 1, 2, 3, 4, 5, 6
V_T = 8
V_PT = 24
V_ML = 40
V_WF = 48
V_XR = 120
V_G = 48
V_W = 84
V_ACC = 128
V_C = 128
V_U = 144
NV3 = 152

def gen_k3():
    A = Asm()
    A(kernel_header("k3_kernel"))
    A("s_cmp_ge_u32 s2, 250\ns_cbranch_scc1 K3_END")
    A(f"s_load_dwordx16 s[4:19], s[0:1], 0")
    A(f"s_load_dwordx8 s[20:27], s[0:1], 64")
    A(f"v_lshrrev_b32 {v(2)}, 6, v0")
    A(f"v_and_b32 {v(V_LANE)}, 63, v0")
    A(f"v_readfirstlane_b32 {s(S_W)}, {v(2)}")
    A(f"v_lshlrev_b32 {v(V_L16)}, 4, {v(V_LANE)}")
    A(f"s_mov_b32 {s(S_GQ)}, s2")
    A(f"s_cmp_ge_u32 {s(S_GQ)}, 125")
    A(f"s_cselect_b32 {s(S_B)}, 1, 0")
    A(f"s_mul_i32 {s(S_0)}, {s(S_B)}, 125")
    A(f"s_sub_u32 {s(S_QT)}, {s(S_GQ)}, {s(S_0)}")
    A("s_waitcnt lgkmcnt(0)")
    srd(A, R_WS, S_WS, WS_SIZE)
    srd(A, R_X, S_X, 2304000)
    srd(A, R_OUT, S_OUT, 2304000)
    srd(A, R_DW, S_DW, 8928)
    A(f"s_mul_i32 {s(S_0)}, {s(S_B)}, 1152000")
    A(f"s_add_u32 {s(S_0)}, {s(S_0)}, {G_OFF}")
    A(f"s_add_u32 {s(R_G)}, {s(S_WS)}, {s(S_0)}")
    A(f"s_addc_u32 {s(R_G+1)}, {s(S_WS+1)}, 0")
    A(f"s_and_b32 {s(R_G+1)}, {s(R_G+1)}, 0xffff")
    A(f"s_mov_b32 {s(R_G+2)}, 1152000\ns_mov_b32 {s(R_G+3)}, 0x00020000")
    A(f"s_mul_i32 {s(S_0)}, {s(S_QT)}, {32*288}")
    A(f"s_sub_u32 {s(S_0)}, {s(S_0)}, {15*288}")
    A(f"s_lshl_b32 {s(S_1)}, {s(S_W)}, 11")
    A(f"s_add_u32 {s(S_0)}, {s(S_0)}, {s(S_1)}")
    A(f"v_add_u32 {v(V_A0)}, {s(S_0)}, {v(V_L16)}")
    A(f"v_add_u32 {v(V_A1)}, 1024, {v(V_A0)}")
    A(f"s_add_u32 m0, {s(S_1)}, {L_G}")
    A("s_nop 0")
    A(f"buffer_load_dwordx4 {v(V_A0)}, {s(R_G,4)}, 0 offen lds")
    A(f"s_add_u32 m0, m0, 1024")
    A("s_nop 0")
    A(f"buffer_load_dwordx4 {v(V_A1)}, {s(R_G,4)}, 0 offen lds")
    A(f"s_mul_i32 {s(S_0)}, {s(S_GQ)}, {4*TILE}")
    A(f"s_lshl_b32 {s(S_1)}, {s(S_W)}, 10")
    A(f"s_add_u32 {s(S_0)}, {s(S_0)}, {s(S_1)}")
    A(f"s_add_u32 {s(S_0)}, {s(S_0)}, {PART_OFF}")
    for sp in range(4):
        A(f"buffer_load_dwordx4 {v(V_PT+4*sp,4)}, {v(V_L16)}, {s(R_WS,4)}, {s(S_0)} offen")
        A(f"s_add_u32 {s(S_0)}, {s(S_0)}, {TILE}")
    A(f"v_and_b32 {v(V_T)}, 31, {v(V_LANE)}")
    A(f"v_lshlrev_b32 {v(V_A2)}, 3, {v(V_T)}")
    A(f"s_lshl_b32 {s(S_0)}, {s(S_GQ)}, 10")
    A(f"s_add_u32 {s(S_0)}, {s(S_0)}, {ML_OFF}")
    for sp in range(4):
        A(f"buffer_load_dwordx2 {v(V_ML+2*sp,2)}, {v(V_A2)}, {s(R_WS,4)}, {s(S_0)} offen offset:{256*sp}")
    A(f"v_mul_u32_u24 {v(V_T)}, 911, v0")
    A(f"v_lshrrev_b32 {v(V_T)}, 16, {v(V_T)}")
    A(f"v_mul_u32_u24 {v(V_T+1)}, 72, {v(V_T)}")
    A(f"v_sub_u32 {v(V_T+1)}, v0, {v(V_T+1)}")
    A(f"v_lshlrev_b32 {v(V_A3)}, 2, {v(V_T+1)}")
    for i in range(31):
        if i == 14: A(f"v_add_u32 {v(V_T+2)}, {14*288}, {v(V_A3)}")
        if i == 28: A(f"v_add_u32 {v(V_T+2)}, {28*288}, {v(V_A3)}")
        base = V_A3 if i < 14 else V_T + 2
        A(f"buffer_load_dword {v(V_W+i)}, {v(base)}, {s(R_DW,4)}, 0 offen offset:{288*(i%14)}")
    A(f"v_mul_u32_u24 {v(V_T+3)}, {4*288}, {v(V_T)}")
    A(f"v_add_u32 {v(V_T+3)}, {v(V_T+3)}, {v(V_A3)}")
    A(f"s_mul_i32 {s(S_0)}, {s(S_GQ)}, {32*288}")
    A(f"s_add_u32 {s(S_1)}, {s(S_0)}, {U_OFF}")
    for r in range(4):
        A(f"buffer_load_dword {v(V_U+r)}, {v(V_T+3)}, {s(R_WS,4)}, {s(S_1)} offen offset:{288*r}")
    A(f"v_add_u32 {v(V_A0)}, {L_G}, {v(V_T+3)}")
    A(f"v_mul_u32_u24 {v(V_T+4)}, {4*304}, {v(V_T)}")
    A(f"v_add3_u32 {v(V_A1)}, {v(V_T+4)}, {v(V_A3)}, 0")
    A(f"v_add_u32 {v(V_A1)}, {L_UC}, {v(V_A1)}")
    A("s_waitcnt vmcnt(35)")
    T = V_T + 6
    A(f"v_max_f32 {v(T)}, {v(V_ML)}, {v(V_ML+2)}")
    A(f"v_max3_f32 {v(T)}, {v(T)}, {v(V_ML+4)}, {v(V_ML+6)}")
    for sp in range(4): A(f"v_sub_f32 {v(V_ML+2*sp)}, {v(V_ML+2*sp)}, {v(T)}")
    for sp in range(4): A(f"v_exp_f32 {v(V_ML+2*sp)}, {v(V_ML+2*sp)}")
    for sp in range(4): A(f"v_mul_f32 {v(V_ML+2*sp)}, {v(V_ML+2*sp)}, {v(V_ML+2*sp+1)}")
    A(f"v_add_f32 {v(T)}, {v(V_ML)}, {v(V_ML+2)}")
    A(f"v_add_f32 {v(T+1)}, {v(V_ML+4)}, {v(V_ML+6)}")
    A(f"v_add_f32 {v(T)}, {v(T)}, {v(T+1)}")
    A(f"v_rcp_f32 {v(T)}, {v(T)}")
    for sp in range(4): A(f"v_mul_f32 {v(V_ML+2*sp)}, {v(V_ML+2*sp)}, {v(T)}")
    for j in range(4):
        for sp in range(4):
            src = V_PT + 4*sp + j
            A(f"v_lshlrev_b32 {v(T+2)}, 16, {v(src)}")
            A(f"v_and_b32 {v(T+3)}, 0xffff0000, {v(src)}")
            if sp == 0:
                A(f"v_mul_f32 {v(T)}, {v(T+2)}, {v(V_ML)}")
                A(f"v_mul_f32 {v(T+1)}, {v(T+3)}, {v(V_ML)}")
            else:
                A(f"v_fmac_f32 {v(T)}, {v(T+2)}, {v(V_ML+2*sp)}")
                A(f"v_fmac_f32 {v(T+1)}, {v(T+3)}, {v(V_ML+2*sp)}")
        A(f"v_cvt_pk_bf16_f32 {v(V_ACC+j)}, {v(T)}, {v(T+1)}")
    A(f"s_lshl_b32 {s(S_1)}, {s(S_W)}, 10")
    A(f"v_add_u32 {v(V_A2)}, {s(S_1)}, {v(V_L16)}")
    A(f"ds_write_b128 {v(V_A2)}, {v(V_ACC,4)} offset:{L_Y}")
    A("s_barrier")
    for r in range(34):
        if r in (12, 24): A("s_waitcnt lgkmcnt(2)")
        A(f"ds_read_b32 {v(V_G+r)}, {v(V_A0)} offset:{288*r}")
    for i in range(8): A(f"v_mov_b32 {v(V_ACC+i)}, 0")
    A("s_waitcnt vmcnt(0) lgkmcnt(0)")
    gl, gh, wl, wh = V_T+8, V_T+9, V_T+10, V_T+11
    for half in range(2):
        for i in range(31):
            pass
    ring = [V_PT + 2*k for k in range(4)]
    for r in range(34):
        if r < 31:
            A(f"v_lshlrev_b32 {v(ring[r%4])}, 16, {v(V_W+r)}")
            A(f"v_and_b32 {v(ring[r%4]+1)}, 0xffff0000, {v(V_W+r)}")
        A(f"v_lshlrev_b32 {v(gl)}, 16, {v(V_G+r)}")
        A(f"v_and_b32 {v(gh)}, 0xffff0000, {v(V_G+r)}")
        for o in range(4):
            i = r - o
            if 0 <= i < 31:
                A(f"v_pk_fma_f32 {v(V_ACC+2*o,2)}, {v(gl,2)}, {v(ring[i%4],2)}, {v(V_ACC+2*o,2)}")
    for o in range(4):
        A(f"v_lshlrev_b32 {v(gl)}, 16, {v(V_U+o)}")
        A(f"v_and_b32 {v(gh)}, 0xffff0000, {v(V_U+o)}")
        A(f"v_pk_mul_f32 {v(V_ACC+2*o,2)}, {v(V_ACC+2*o,2)}, {v(gl,2)}")
        A(f"v_cvt_pk_bf16_f32 {v(wl)}, {v(V_ACC+2*o)}, {v(V_ACC+2*o+1)}")
        A(f"ds_write_b32 {v(V_A1)}, {v(wl)} offset:{304*o}")
    A(f"s_cmp_ge_u32 {s(S_W)}, 5\ns_cbranch_scc1 K3_IDLE")
    A(f"s_mul_i32 {s(S_1)}, {s(S_W)}, {18*1024}")
    A(f"s_add_u32 {s(S_1)}, {s(S_1)}, {WF_OFF}")
    for k in range(18):
        if k and k % 4 == 0: A(f"s_add_u32 {s(S_1)}, {s(S_1)}, 4096")
        A(f"buffer_load_dwordx4 {v(V_WF+4*k,4)}, {v(V_L16)}, {s(R_WS,4)}, {s(S_1)} offen offset:{1024*(k%4)}")
    A(f"v_and_b32 {v(V_T)}, 31, {v(V_LANE)}")
    A(f"v_lshrrev_b32 {v(V_T+1)}, 5, {v(V_LANE)}")
    A(f"v_mul_u32_u24 {v(V_T+2)}, 288, {v(V_T)}")
    A(f"v_lshl_add_u32 {v(V_A0)}, {v(V_T+1)}, 4, {v(V_T+2)}")
    A(f"v_mul_u32_u24 {v(V_T+2)}, 304, {v(V_T)}")
    A(f"v_lshl_add_u32 {v(V_A1)}, {v(V_T+1)}, 4, {v(V_T+2)}")
    A(f"s_lshl_b32 {s(S_1)}, {s(S_W)}, 6")
    A(f"s_add_u32 {s(S_0)}, {s(S_0)}, {s(S_1)}")
    A(f"buffer_load_dwordx4 {v(V_XR,4)}, {v(V_A0)}, {s(R_X,4)}, {s(S_0)} offen")
    A(f"buffer_load_dwordx4 {v(V_XR+4,4)}, {v(V_A0)}, {s(R_X,4)}, {s(S_0)} offen offset:32")
    A("s_waitcnt lgkmcnt(0)")
    A("s_barrier")
    B = V_T
    slots = [8, 12, 16, 20, 24, 28, 32, 36]
    def rd(k):
        if k < 9: return f"ds_read_b128 {v(slots[k%8],4)}, {v(V_L16)} offset:{L_Y + 1024*k}"
        return f"ds_read_b128 {v(slots[k%8],4)}, {v(V_A1)} offset:{L_UC + 32*(k-9)}"
    for k in range(7): A(rd(k))
    for k in range(18):
        A(f"s_waitcnt vmcnt({2 + 17 - k}) lgkmcnt({min(6, 17-k)})")
        A(f"v_mfma_f32_32x32x16_bf16 {v(V_C,16)}, {v(V_WF+4*k,4)}, {v(slots[k%8],4)}, {v(V_C,16) if k else '0'}")
        if k + 7 < 18: A(rd(k + 7))
    A("s_waitcnt vmcnt(0)")
    for kp in range(2):
        for j in range(4):
            A(f"v_lshlrev_b32 {v(V_T)}, 16, {v(V_XR+4*kp+j)}")
            A(f"v_and_b32 {v(V_T+1)}, 0xffff0000, {v(V_XR+4*kp+j)}")
            A(f"v_add_f32 {v(V_T)}, {v(V_T)}, {v(V_C+8*kp+2*j)}")
            A(f"v_add_f32 {v(V_T+1)}, {v(V_T+1)}, {v(V_C+8*kp+2*j+1)}")
            A(f"v_cvt_pk_bf16_f32 {v(V_XR+4*kp+j)}, {v(V_T)}, {v(V_T+1)}")
    A(f"buffer_store_dwordx4 {v(V_XR,4)}, {v(V_A0)}, {s(R_OUT,4)}, {s(S_0)} offen")
    A(f"s_cmp_eq_u32 {s(S_W)}, 4\ns_cbranch_scc1 K3_END")
    A(f"buffer_store_dwordx4 {v(V_XR+4,4)}, {v(V_A0)}, {s(R_OUT,4)}, {s(S_0)} offen offset:32")
    A("s_branch K3_END")
    A("K3_IDLE:")
    A("s_waitcnt lgkmcnt(0)")
    A("s_barrier")
    A("K3_END:")
    A("s_endpgm")
    return A.L

assert all((t * 911) >> 16 == t // 72 for t in range(576))
K3_LAUNCH = f"; @launch kernel=k3_kernel grid=(250,1,1) block=(576,1,1) lds={K3_LDS}"
def k3_desc(): return kernel_desc("k3_kernel", NV3, NV3)
```

```python
import sys
from asmlib import *
import k1, k2, k3
HEADER = open('standalone__conformer_family_branchformer__speech.s.ref').read().split('; Override launch')[0]
def build(path, stamps=False):
    k2.STAMPS = stamps
    L1, _ = fix_hazards(k1.gen_k1()); L2, _ = fix_hazards(k2.gen_k2()); L3, _ = fix_hazards(k3.gen_k3())
    out = [HEADER.rstrip(), k1.K1_LAUNCH, k2.K2_LAUNCH, k3.K3_LAUNCH, '.amdgcn_target "amdgcn-amd-amdhsa--gfx950"', '.text'] + L1 + L2 + L3 + \
          ['.section .rodata,"a"', k1.k1_desc(), k2.k2_desc(), k3.k3_desc()]
    open(path, 'w').write("\n".join(out) + "\n")
if __name__ == '__main__':
    build(sys.argv[1], len(sys.argv) > 2)
```

```python
import re

def v(i, n=1): return f"v{i}" if n == 1 else f"v[{i}:{i+n-1}]"
def a(i, n=1): return f"a{i}" if n == 1 else f"a[{i}:{i+n-1}]"
def s(i, n=1): return f"s{i}" if n == 1 else f"s[{i}:{i+n-1}]"

_REG = re.compile(r'^(-|abs\()?([vas])(?:(\d+)|\[(\d+):(\d+)\])\)?$')

def parse_reg(tok):
    t = tok.strip()
    if t.startswith('-'): t = t[1:]
    if t.startswith('|') and t.endswith('|'): t = t[1:-1]
    if t.startswith('abs(') and t.endswith(')'): t = t[4:-1]
    if t == 'vcc': return [('s', 'vcc')]
    if t in ('vcc_lo', 'vcc_hi'): return [('s', 'vcc')]
    if t == 'exec': return [('s', 'exec')]
    if t == 'm0': return [('s', 'm0')]
    m = re.match(r'^([vas])(?:(\d+)|\[(\d+):(\d+)\])$', t)
    if not m: return []
    k = m.group(1)
    if m.group(2) is not None: return [(k, int(m.group(2)))]
    return [(k, i) for i in range(int(m.group(3)), int(m.group(4)) + 1)]

TRANS = ('v_exp_f32', 'v_log_f32', 'v_rcp_f32', 'v_rsq_f32', 'v_sqrt_f32', 'v_sin_f32', 'v_cos_f32', 'v_rcp_iflag_f32')

def split_ops(txt):
    ops = []; depth = 0; cur = ''
    for ch in txt:
        if ch in '[(': depth += 1
        if ch in '])': depth -= 1
        if ch == ',' and depth == 0:
            ops.append(cur.strip()); cur = ''
        else: cur += ch
    if cur.strip(): ops.append(cur.strip())
    return ops

class Ins:
    __slots__ = ('text', 'mn', 'rd', 'wr', 'kind', 'passes', 'srcc', 'ab', 'states', 'dpp', 'label', 'target')
    def __init__(self, text):
        self.text = text
        t = text.split(';')[0].strip()
        self.label = None; self.target = None
        self.rd = set(); self.wr = set(); self.kind = 'other'; self.passes = 0; self.srcc = set(); self.ab = set(); self.states = 1; self.dpp = False
        if t.endswith(':'):
            self.mn = ''; self.kind = 'label'; self.label = t[:-1]; self.states = 0; return
        if not t or t.startswith('.'):
            self.mn = ''; self.kind = 'dir'; self.states = 0; return
        parts = t.split(None, 1)
        mn = parts[0]; self.mn = mn
        rest = parts[1] if len(parts) > 1 else ''
        ops = split_ops(rest)
        mods = ''
        if ops:
            last = ops[-1].split()
            if len(last) > 1:
                ops[-1] = last[0]; mods = ' '.join(last[1:])
        R = [parse_reg(o) for o in ops]
        flat = lambda L: set(x for l in L for x in l)
        if mn == 's_nop':
            self.kind = 'nop'; self.states = int(ops[0], 0) + 1
        elif mn.startswith('v_mfma'):
            self.kind = 'mfma'
            self.passes = 8 if '32x32x16' in mn else 4 if '16x16x32' in mn else 2 if '4x4x4' in mn else None
            assert self.passes, mn
            self.wr = set(R[0]); self.ab = set(R[1]) | set(R[2]); self.srcc = set(R[3]); self.rd = self.ab | self.srcc
        elif mn.startswith('v_'):
            self.kind = 'trans' if mn.replace('_e32', '').replace('_e64', '') in TRANS else 'valu'
            if 'dpp' in mn or 'quad_perm' in mods or 'row_' in mods: self.dpp = True
            if mn.startswith('v_permlane') and 'swap' in mn:
                self.kind = 'permlane'; self.rd = flat(R); self.wr = flat(R)
            elif mn.startswith('v_cmp'):
                self.wr = set(R[0]); self.rd = flat(R[1:])
            elif mn.startswith(('v_add_co', 'v_sub_co', 'v_addc_co', 'v_subb_co', 'v_subrev_co')):
                self.wr = set(R[0]) | set(R[1]); self.rd = flat(R[2:])
            elif mn.startswith('v_nop'):
                self.kind = 'nop'
            else:
                self.wr = set(R[0]); self.rd = flat(R[1:])
                if mn.startswith(('v_fmac', 'v_mac', 'v_pk_fmac', 'v_dot2c')) or self.dpp: self.rd |= set(R[0])
                if mn.startswith('v_cndmask') and len(ops) == 3: self.rd.add(('s', 'vcc'))
                if mn.startswith(('v_readfirstlane', 'v_readlane')): self.kind = 'readlane'
        elif mn.startswith('ds_'):
            self.kind = 'ds'
            if mn.startswith(('ds_read', 'ds_bpermute', 'ds_permute', 'ds_swizzle')) or '_rtn' in mn:
                self.wr = set(R[0]); self.rd = flat(R[1:])
            else: self.rd = flat(R)
        elif mn.startswith(('buffer_', 'global_', 'flat_')):
            self.kind = 'vmem'
            if ' lds' in (' ' + mods) or '_lds_' in mn:
                self.kind = 'dma'; self.rd = flat(R) | {('s', 'm0')}
            elif 'load' in mn:
                self.wr = set(R[0]); self.rd = flat(R[1:])
            elif 'atomic' in mn and 'sc0' in mods:
                self.wr = set(R[0]); self.rd = flat(R)
            elif mn in ('buffer_wbl2', 'buffer_inv'):
                pass
            else:
                self.rd = flat(R)
                if 'x4' in mn or 'x3' in mn:
                    self.kind = 'wstore'
                    self.ab = set(R[0]) if mn.startswith('buffer') else set(R[1])
        elif mn.startswith('s_'):
            self.kind = 'salu'
            if mn.startswith(('s_cbranch', 's_branch')):
                self.kind = 'branch'; self.target = ops[0]
            elif mn.startswith(('s_cmp', 's_waitcnt', 's_barrier', 's_endpgm', 's_setprio', 's_sleep', 's_bitcmp')):
                self.rd = flat(R)
            else:
                self.wr = set(R[0]) if R else set(); self.rd = flat(R[1:])
                if 'saveexec' in mn: self.wr.add(('s', 'exec'))
        else:
            raise ValueError('unknown instr ' + text)

VALUK = ('valu', 'trans', 'permlane', 'readlane')
XD = {2: 5, 4: 8, 8: 12, 16: 20}
XC = {2: 4, 4: 6, 8: 10, 16: 18}
XW = {2: 1, 4: 3, 8: 7, 16: 15}

def need(p, c):
    n = 0
    pv = p.kind in VALUK; cv = c.kind in VALUK
    pw_v = {r for r in p.wr if r[0] != 's'}; pw_s = {r for r in p.wr if r[0] == 's'}
    if pv:
        if c.kind == 'mfma' and (pw_v & c.rd): n = max(n, 2)
        if c.kind == 'permlane' and (pw_v & c.rd): n = max(n, 2)
        if cv and c.dpp and (pw_v & c.rd): n = max(n, 2)
        if c.kind == 'readlane' and (pw_v & c.rd): n = max(n, 1)
        if p.kind == 'trans' and cv and c.kind != 'trans' and (pw_v & c.rd): n = max(n, 1)
        if p.kind == 'trans' and c.kind == 'trans' and (pw_v & c.rd): n = max(n, 1)
        if pw_s:
            if cv and (pw_s & c.rd): n = max(n, 4 if c.kind == 'readlane' else 2)
            if c.kind in ('vmem', 'dma', 'wstore') and (pw_s & c.rd): n = max(n, 5)
            if ('s', 'exec') in pw_s and c.kind == 'mfma': n = max(n, 4)
    if p.kind == 'mfma':
        P = p.passes
        if c.kind == 'mfma':
            if p.wr & c.ab: n = max(n, XD[P])
            if p.wr & c.srcc:
                if p.wr == c.srcc and c.passes == P: n = max(n, 2 if P == 2 else 0)
                else: n = max(n, XC[P])
            elif p.wr & c.wr: n = max(n, XC[P])
        elif cv:
            if p.wr & (c.rd | c.wr): n = max(n, XD[P])
            if p.srcc & c.wr: n = max(n, XW[P])
        elif c.kind in ('ds', 'vmem', 'dma', 'wstore'):
            if p.wr & (c.rd | c.wr): n = max(n, XD[P])
    if p.kind == 'salu' and ('s', 'm0') in p.wr and c.kind == 'dma': n = max(n, 1)
    if p.kind == 'wstore' and (p.ab & c.wr): n = max(n, 2 if cv else 1)
    return n

class Asm:
    def __init__(self):
        self.L = []
        self.nlab = 0
    def __call__(self, txt):
        for line in txt.split('\n'):
            line = line.strip()
            if line: self.L.append(line)
    def label(self, base='L'):
        self.nlab += 1
        return f"{base}_{self.nlab}"
    def extend(self, lines):
        for l in lines: self(l)

def fix_hazards(lines, verbose=False):
    ins = [Ins(l) for l in lines]
    out = []
    def required(hist, c):
        dist = 0; worst = 0
        for p in reversed(hist):
            if dist >= 20: break
            if p.states == 0: continue
            n = need(p, c)
            if n > dist: worst = max(worst, n - dist)
            dist += p.states
        return worst
    hist = []
    ninserted = 0
    for c in ins:
        if c.kind not in ('label', 'dir'):
            w = required(hist, c)
            while w > 0:
                k = min(w, 16)
                nop = Ins(f"s_nop {k-1}")
                out.append(nop); hist.append(nop); w -= k; ninserted += 1
                if verbose: print('  inserted', nop.text, 'before', c.text)
        out.append(c); hist.append(c)
        if c.mn in ('s_branch', 's_endpgm', 's_setpc_b64'):
            hist = []
    labpos = {c.label: i for i, c in enumerate(out) if c.kind == 'label'}
    for i, c in enumerate(out):
        if c.kind == 'branch' and c.target in labpos:
            h = []
            j = i
            tot = 0
            while j >= 0 and tot < 24:
                if out[j].mn in ('s_branch', 's_endpgm') and j != i: break
                h.insert(0, out[j]); tot += out[j].states; j -= 1
            j = labpos[c.target]; tot = 0
            while j < len(out) and tot < 24:
                t = out[j]
                if t.kind not in ('label', 'dir'):
                    w = required(h, t)
                    if w > 0:
                        raise RuntimeError(f"hazard across branch {c.text} -> {t.text}: need {w} more states")
                h.append(t); tot += t.states; j += 1
                if t.mn in ('s_branch', 's_endpgm'): break
    return [c.text for c in out], ninserted

def kernel_header(name):
    return f""".globl {name}
.p2align 8
.type {name},@function
{name}:"""

def kernel_desc(name, vgpr, accum, sgpr=96):
    return f""".p2align 6
.amdhsa_kernel {name}
  .amdhsa_next_free_vgpr {vgpr}
  .amdhsa_next_free_sgpr {sgpr}
  .amdhsa_accum_offset {accum}
  .amdhsa_group_segment_fixed_size 0
  .amdhsa_kernarg_size 96
  .amdhsa_user_sgpr_count 2
  .amdhsa_user_sgpr_kernarg_segment_ptr 1
  .amdhsa_system_sgpr_workgroup_id_x 1
.end_amdhsa_kernel"""

class Stamps:
    def __init__(self, on, base=60, wg=77, tag="X"):
        self.on = on; self.base = base; self.wg = wg; self.tag = tag
    def __call__(self, A, i):
        if not self.on: return
        b = self.base + 4 * i
        A(f"s_memtime {s(b,2)}")
        A(f"s_memrealtime {s(b+2,2)}")
        A("s_waitcnt lgkmcnt(0)")
    def dump(self, A, n, wave_sgpr, tmp, maxrow=8):
        if not self.on: return
        A(f"s_load_dwordx2 {s(tmp+4,2)}, s[0:1], 80")
        A("s_waitcnt lgkmcnt(0)")
        A(f"s_mov_b32 {s(tmp)}, {s(tmp+4)}\ns_and_b32 {s(tmp+1)}, {s(tmp+5)}, 0xffff\ns_mov_b32 {s(tmp+2)}, 256\ns_mov_b32 {s(tmp+3)}, 0x00020000")
        A(f"s_cmp_eq_u32 s2, {self.wg}\ns_cbranch_scc0 {self.tag}_NOST")
        A(f"s_lshl_b32 {s(tmp+4)}, {s(wave_sgpr)}, 5")
        A("v_mov_b32 v2, 0")
        for i in range(1, n):
            b = self.base + 4 * i
            A(f"s_sub_u32 {s(tmp+5)}, {s(b)}, {s(self.base)}")
            A(f"s_sub_u32 {s(tmp+6)}, {s(b+2)}, {s(self.base+2)}")
            A(f"s_lshl_b32 {s(tmp+6)}, {s(tmp+6)}, 20")
            A(f"s_or_b32 {s(tmp+5)}, {s(tmp+5)}, {s(tmp+6)}")
            A(f"v_mov_b32 v3, {s(tmp+5)}")
            A(f"buffer_store_dword v3, v2, {s(tmp,4)}, {s(tmp+4)} offen offset:{4*(i-1)}")
        A(f"{self.tag}_NOST:")
```

```python
from asmlib import *
from layout2 import *
import struct, math
def f32(x): return "0x%08x" % struct.unpack('<I', struct.pack('<f', x))[0]

ST = Stamps(False, base=64, wg=77, tag="K1")
L_ACT = 0
L_ACT2 = 18432
L_WA = 36864
L_WB = L_WA + 45056
L_SCR = L_WA + 90112
K1_LDS = L_SCR + 25600
S_X, S_WQ, S_WK, S_WV, S_WAO, S_WUP, S_DW, S_WDN, S_WM, S_OUT, S_DBG, S_WS = [4 + 2*i for i in range(12)]
R_A, R_B, R_C, R_WS = 28, 32, 36, 40
S_W, S_GT0, S_RT, S_T = 44, 45, 46, 47
S_0, S_1, S_2, S_3, S_4, S_5, S_TYPE, S_RBB, S_B = 48, 49, 50, 51, 52, 53, 54, 55, 3
V_LANE = 1; V_L16 = 2; V_TR = 3; V_TR2 = 4; V_A0 = 5; V_A1 = 6; V_A2 = 7; V_A3 = 8
V_K0 = 10
V_X = 12
V_F = 24
V_T = 44
V_B = 60
V_AF = 96
V_C = 24
V_C2 = 128
NV1 = 144

def srd(A, r, ptr, size):
    A(f"s_mov_b32 {s(r)}, {s(ptr)}\ns_and_b32 {s(r+1)}, {s(ptr+1)}, 0xffff\ns_mov_b32 {s(r+2)}, {size}\ns_mov_b32 {s(r+3)}, 0x00020000")

def dma_mat(A, r, src_off, nbytes, lds_off, tag):
    npieces = (nbytes + 1023) // 1024
    per = npieces // 10
    extra = npieces - per * 10
    A(f"s_mul_i32 {s(S_0)}, {s(S_W)}, {per*1024}")
    A(f"s_add_u32 m0, {s(S_0)}, {lds_off}")
    if src_off: A(f"s_add_u32 {s(S_0)}, {s(S_0)}, {src_off}")
    else: A("s_nop 0")
    for k in range(per):
        if k and k % 4 == 0:
            A(f"s_add_u32 m0, m0, 4096\ns_add_u32 {s(S_0)}, {s(S_0)}, 4096")
        A(f"buffer_load_dwordx4 {v(V_L16)}, {s(r,4)}, {s(S_0)} offen offset:{1024*(k%4)} lds")
    assert extra <= 1
    if extra:
        lab = f"K1_DX_{tag}"
        A(f"s_cmp_eq_u32 {s(S_W)}, 9\ns_cbranch_scc0 {lab}")
        A(f"s_mov_b32 m0, {lds_off + per*10*1024}")
        A(f"s_mov_b32 {s(S_0)}, {src_off + per*10*1024}")
        A(f"buffer_load_dwordx4 {v(V_L16)}, {s(r,4)}, {s(S_0)} offen lds")
        A(f"{lab}:")

def dma_loop(A, r, ngroups, lds_off, tag):
    A(f"s_sub_u32 {s(S_0)}, {s(S_W)}, 8")
    A(f"s_lshl_b32 {s(S_0)}, {s(S_0)}, 12")
    A(f"K1_DL_{tag}:")
    A(f"s_add_u32 m0, {s(S_0)}, {lds_off}")
    A("s_nop 0")
    for k in range(4):
        A(f"buffer_load_dwordx4 {v(V_L16)}, {s(r,4)}, {s(S_0)} offen offset:{1024*k} lds")
    A(f"s_add_u32 {s(S_0)}, {s(S_0)}, 8192")
    A(f"s_cmp_lt_u32 {s(S_0)}, {ngroups*4096}")
    A(f"s_cbranch_scc1 K1_DL_{tag}")

def bf16r(A, dst, src):
    A(f"v_cvt_pk_bf16_f32 {v(dst)}, {v(src)}, {v(src)}")
    A(f"v_and_b32 {v(dst)}, 0xffff0000, {v(dst)}")

def red8(A, r, t):
    A(f"v_add_f32_dpp {v(t)}, {v(r)}, {v(r)} quad_perm:[1,0,3,2] row_mask:0xf bank_mask:0xf")
    A(f"v_add_f32_dpp {v(r)}, {v(t)}, {v(t)} quad_perm:[2,3,0,1] row_mask:0xf bank_mask:0xf")
    A(f"v_add_f32_dpp {v(t)}, {v(r)}, {v(r)} row_half_mirror row_mask:0xf bank_mask:0xf")

def x_dma(A):
    A(f"s_mul_i32 {s(S_1)}, {s(S_W)}, 2304")
    A(f"s_mul_i32 {s(S_0)}, {s(S_GT0)}, {TILE}")
    A(f"s_add_u32 m0, {s(S_1)}, {L_ACT2}")
    A(f"s_add_u32 {s(S_0)}, {s(S_0)}, {s(S_1)}")
    A(f"buffer_load_dwordx4 {v(V_L16)}, {s(R_A,4)}, {s(S_0)} offen lds")
    A(f"buffer_load_dwordx4 {v(V_L16)}, {s(R_A,4)}, {s(S_0)} offen offset:1024 lds")
    A(f"s_mov_b64 exec, 0xffff")
    A(f"buffer_load_dwordx4 {v(V_L16)}, {s(R_A,4)}, {s(S_0)} offen offset:2048 lds")
    A(f"s_mov_b64 exec, -1")

def ln_addr(A):
    T = V_T
    A(f"v_lshrrev_b32 {v(T)}, 3, {v(V_LANE)}")
    A(f"v_and_b32 {v(T+1)}, 7, {v(V_LANE)}")
    A(f"v_mul_u32_u24 {v(T+2)}, 288, {v(T)}")
    A(f"v_lshl_add_u32 {v(T+2)}, {v(T+1)}, 2, {v(T+2)}")
    A(f"s_mul_i32 {s(S_1)}, {s(S_W)}, 2304")
    A(f"s_add_u32 {s(S_1)}, {s(S_1)}, {L_ACT2}")
    A(f"v_add_u32 {v(V_A0)}, {s(S_1)}, {v(T+2)}")
    A(f"s_lshl_b32 {s(S_1)}, {s(S_W)}, 3")
    A(f"v_add_u32 {v(T)}, {s(S_1)}, {v(T)}")
    A(f"v_lshrrev_b32 {v(T+2)}, 5, {v(T)}")
    A(f"v_and_b32 {v(T)}, 31, {v(T)}")
    A(f"v_lshrrev_b32 {v(T+3)}, 2, {v(T+1)}")
    A(f"v_lshl_add_u32 {v(T)}, {v(T+3)}, 5, {v(T)}")
    A(f"v_lshlrev_b32 {v(T)}, 4, {v(T)}")
    A(f"v_and_b32 {v(T+1)}, 3, {v(T+1)}")
    A(f"v_lshl_add_u32 {v(T)}, {v(T+1)}, 2, {v(T)}")
    A(f"v_mad_u32_u24 {v(V_A1)}, {v(T+2)}, {s(S_4)}, {v(T)}")

def ln_compute(A):
    F = V_F; T = V_T
    for k in range(0, 8, 2): A(f"ds_read2_b32 {v(V_X+k,2)}, {v(V_A0)} offset0:{8*k} offset1:{8*k+8}")
    A(f"ds_read_b32 {v(V_X+8)}, {v(V_A0)} offset:256")
    for k in range(9):
        if k % 2 == 0: A(f"s_waitcnt lgkmcnt({4 - k//2})")
        A(f"v_lshlrev_b32 {v(F+2*k)}, 16, {v(V_X+k)}")
        A(f"v_and_b32 {v(F+2*k+1)}, 0xffff0000, {v(V_X+k)}")
    A(f"v_pk_add_f32 {v(T,2)}, {v(F,2)}, {v(F+2,2)}")
    for k in range(4, 18, 2): A(f"v_pk_add_f32 {v(T,2)}, {v(T,2)}, {v(F+k,2)}")
    A(f"v_add_f32 {v(T)}, {v(T)}, {v(T+1)}")
    red8(A, T, T+1)
    A(f"v_mul_f32 {v(T)}, {f32(1.0/144)}, {v(T+1)}")
    bf16r(A, T+2, T)
    A(f"v_sub_f32 {v(T+3)}, {v(T)}, {v(T+2)}")
    for k in range(0, 18, 2): A(f"v_pk_add_f32 {v(F+k,2)}, {v(F+k,2)}, {v(T+2,2)} op_sel_hi:[1,0] neg_lo:[0,1] neg_hi:[0,1]")
    A(f"v_pk_mul_f32 {v(T+4,2)}, {v(F,2)}, {v(F,2)}")
    for k in range(2, 18, 2): A(f"v_pk_fma_f32 {v(T+4,2)}, {v(F+k,2)}, {v(F+k,2)}, {v(T+4,2)}")
    A(f"v_add_f32 {v(T+4)}, {v(T+4)}, {v(T+5)}")
    for k in range(9): A(f"v_cvt_pk_bf16_f32 {v(V_X+k)}, {v(F+2*k)}, {v(F+2*k+1)}")
    red8(A, T+4, T+5)
    A(f"v_mul_f32 {v(T+4)}, {f32(1.0/144)}, {v(T+5)}")
    A(f"v_fma_f32 {v(T+4)}, -{v(T+3)}, {v(T+3)}, {v(T+4)}")
    A(f"v_max_f32 {v(T+4)}, 0, {v(T+4)}")
    bf16r(A, T+4, T+4)
    A(f"v_add_f32 {v(T+4)}, {f32(1e-5)}, {v(T+4)}")
    bf16r(A, T+4, T+4)
    A(f"v_sqrt_f32 {v(T+4)}, {v(T+4)}")
    for k in range(9):
        A(f"v_lshlrev_b32 {v(F+2*k)}, 16, {v(V_X+k)}")
        A(f"v_and_b32 {v(F+2*k+1)}, 0xffff0000, {v(V_X+k)}")
        if k == 0: bf16r(A, T+4, T+4)
        if k == 1: A(f"v_rcp_f32 {v(T+4)}, {v(T+4)}")
    for k in range(9):
        A(f"v_pk_mul_f32 {v(F+2*k,2)}, {v(F+2*k,2)}, {v(T+4,2)} op_sel_hi:[1,0]")
    for k in range(9):
        A(f"v_cvt_pk_bf16_f32 {v(V_X+k)}, {v(F+2*k)}, {v(F+2*k+1)}")
        A(f"ds_write_b32 {v(V_A1)}, {v(V_X+k)} offset:{1024*k}")

def tr_lane(A, dst, stride):
    T = V_T; L = V_LANE
    A(f"v_lshrrev_b32 {v(T)}, 5, {v(L)}")
    A(f"v_bfe_u32 {v(T+1)}, {v(L)}, 2, 2")
    A(f"v_lshl_add_u32 {v(T)}, {v(T)}, 3, {v(T+1)}")
    A(f"v_mul_u32_u24 {v(T)}, {stride}, {v(T)}")
    A(f"v_bfe_u32 {v(T+1)}, {v(L)}, 4, 1")
    A(f"v_lshl_add_u32 {v(T)}, {v(T+1)}, 5, {v(T)}")
    A(f"v_and_b32 {v(T+1)}, 1, {v(L)}")
    A(f"v_lshl_add_u32 {v(T)}, {v(T+1)}, 4, {v(T)}")
    A(f"v_bfe_u32 {v(T+1)}, {v(L)}, 1, 1")
    A(f"v_lshl_add_u32 {v(dst)}, {v(T+1)}, 3, {v(T)}")

def tr_reads(k, slot, stride, base, base2=None):
    out = []
    for rho in (0, 1):
        off = (16 * k + 4 * rho) * stride
        b = base
        if off > 65535:
            b = base2; off -= 80 * stride
        out.append(f"ds_read_b64_tr_b16 {v(V_AF+4*slot+2*rho,2)}, {v(b)} offset:{off}")
    return out

def gemm(A, areads, baddr, boff, acc, swapped=False, b_ready=False):
    NS = 8
    seq = []
    for k in range(9):
        r = [] if b_ready else [f"ds_read_b128 {v(V_B+4*k,4)}, {v(baddr)} offset:{boff + 1024*k}"]
        seq.append(r + areads(k, k % NS))
    n = len(seq[0])
    PD = min(7, 15 // n)
    for k in range(PD): A.extend(seq[k])
    issued = PD
    for k in range(9):
        A(f"s_waitcnt lgkmcnt({n * (issued - (k + 1))})")
        x, y = v(V_AF + 4 * (k % NS), 4), v(V_B + 4 * k, 4)
        if swapped: x, y = y, x
        A(f"v_mfma_f32_32x32x16_bf16 {v(acc,16)}, {x}, {y}, {v(acc,16) if k else '0'}")
        if issued < 9:
            A.extend(seq[issued]); issued += 1

def pack8(A, dst, src):
    for i in range(4): A(f"v_cvt_pk_bf16_f32 {v(dst+i)}, {v(src+2*i)}, {v(src+2*i+1)}")

def pi_row(A, dst, t0, t1):
    L = V_LANE
    A(f"v_and_b32 {v(dst)}, 0x13, {v(L)}")
    A(f"v_bfe_u32 {v(t0)}, {v(L)}, 3, 1")
    A(f"v_bfe_u32 {v(t1)}, {v(L)}, 2, 1")
    A(f"v_lshl_add_u32 {v(dst)}, {v(t0)}, 2, {v(dst)}")
    A(f"v_lshl_add_u32 {v(dst)}, {v(t1)}, 3, {v(dst)}")

def gelu16(A, C, G):
    for i in range(0, 16, 2): A(f"v_pk_mul_f32 {v(G+i,2)}, {v(C+i,2)}, {v(C+i,2)}")
    for i in range(0, 16, 2): A(f"v_pk_fma_f32 {v(G+i,2)}, {v(G+i,2)}, {v(V_K0,2)}, {v(V_K0,2)} op_sel:[0,0,1] op_sel_hi:[1,0,1]")
    for i in range(0, 16, 2): A(f"v_pk_mul_f32 {v(G+i,2)}, {v(G+i,2)}, {v(C+i,2)}")
    for i in range(16): A(f"v_exp_f32 {v(G+i)}, {v(G+i)}")
    for i in range(0, 16, 2): A(f"v_pk_add_f32 {v(G+i,2)}, {v(G+i,2)}, 1.0 op_sel_hi:[1,0]")
    for i in range(16): A(f"v_rcp_f32 {v(G+i)}, {v(G+i)}")
    for i in range(0, 16, 2): A(f"v_pk_mul_f32 {v(C+i,2)}, {v(C+i,2)}, {v(G+i,2)}")

def wf_store(A, base_sgpr_kstep, off, lab):
    A(f"s_cmp_eq_u32 {s(S_T)}, 4\ns_cbranch_scc1 {lab}_T4")
    A(f"s_mul_i32 {s(S_1)}, {s(S_T)}, 9")
    A(f"s_add_u32 {s(S_1)}, {s(S_1)}, {s(S_0)}")
    A(f"s_lshl_b32 {s(S_1)}, {s(S_1)}, 10")
    A(f"s_add_u32 {s(S_1)}, {s(S_1)}, {off}")
    A(f"buffer_store_dwordx4 {v(V_AF,4)}, {v(V_L16)}, {s(R_WS,4)}, {s(S_1)} offen")
    A(f"s_cmp_eq_u32 {s(S_0)}, 8\ns_cbranch_scc1 {lab}_E")
    A(f"buffer_store_dwordx4 {v(V_AF+4,4)}, {v(V_L16)}, {s(R_WS,4)}, {s(S_1)} offen offset:1024")
    A(f"s_branch {lab}_E")
    A(f"{lab}_T4:")
    A(f"s_lshl_b32 {s(S_1)}, {s(S_0)}, 9")
    A(f"s_add_u32 {s(S_1)}, {s(S_1)}, {off + 36864}")
    A(f"v_and_b32 {v(V_T)}, 15, {v(V_LANE)}")
    A(f"v_lshrrev_b32 {v(V_T+1)}, 5, {v(V_LANE)}")
    A(f"v_lshl_add_u32 {v(V_T)}, {v(V_T+1)}, 4, {v(V_T)}")
    A(f"v_lshlrev_b32 {v(V_T)}, 4, {v(V_T)}")
    A(f"s_mov_b32 exec_lo, 0xffff\ns_mov_b32 exec_hi, 0xffff")
    A(f"buffer_store_dwordx4 {v(V_AF,4)}, {v(V_T)}, {s(R_WS,4)}, {s(S_1)} offen")
    A(f"s_cmp_eq_u32 {s(S_0)}, 8\ns_cbranch_scc1 {lab}_X")
    A(f"buffer_store_dwordx4 {v(V_AF+4,4)}, {v(V_T)}, {s(R_WS,4)}, {s(S_1)} offen offset:512")
    A(f"{lab}_X:")
    A(f"s_mov_b64 exec, -1")
    A(f"{lab}_E:")

def gen_k1():
    A = Asm()
    A(kernel_header("k1_kernel"))
    A("s_cmp_ge_u32 s2, 256\ns_cbranch_scc1 K1_EXIT")
    ST(A, 0)
    A(f"s_load_dwordx16 s[4:19], s[0:1], 0")
    A(f"s_load_dwordx8 s[20:27], s[0:1], 64")
    A(f"v_lshrrev_b32 {v(2)}, 6, v0")
    A(f"v_and_b32 {v(V_LANE)}, 63, v0")
    A(f"v_readfirstlane_b32 {s(S_W)}, {v(2)}")
    A(f"v_lshlrev_b32 {v(V_L16)}, 4, {v(V_LANE)}")
    A(f"s_and_b32 {s(S_0)}, s2, 7")
    A(f"s_lshr_b32 {s(S_1)}, s2, 3")
    A(f"s_and_b32 {s(S_TYPE)}, {s(S_1)}, 1")
    A(f"s_lshr_b32 {s(S_1)}, {s(S_1)}, 1")
    A(f"s_lshr_b32 {s(S_B)}, {s(S_0)}, 2")
    A(f"s_and_b32 {s(S_0)}, {s(S_0)}, 3")
    A(f"s_lshl_b32 {s(S_RBB)}, {s(S_0)}, 4")
    A(f"s_add_u32 {s(S_RBB)}, {s(S_RBB)}, {s(S_1)}")
    A(f"s_mul_i32 {s(S_GT0)}, {s(S_B)}, 125")
    A(f"s_lshl_b32 {s(S_0)}, {s(S_RBB)}, 1")
    A(f"s_add_u32 {s(S_GT0)}, {s(S_GT0)}, {s(S_0)}")
    A(f"s_cmp_ge_u32 {s(S_W)}, 5")
    A(f"s_cselect_b32 {s(S_RT)}, 1, 0")
    A(f"s_mul_i32 {s(S_0)}, {s(S_RT)}, 5")
    A(f"s_sub_u32 {s(S_T)}, {s(S_W)}, {s(S_0)}")
    A(f"s_mov_b32 {s(S_4)}, 9216")
    A("s_waitcnt lgkmcnt(0)")
    srd(A, R_WS, S_WS, WS_SIZE)
    if ST.on: A(f"s_lshl_b32 s100, {s(S_TYPE)}, 3\ns_add_u32 s100, s100, 8")
    A(f"s_cmp_ge_u32 {s(S_RBB)}, 63\ns_cbranch_scc1 K1_WTYPE")
    srd(A, R_A, S_X, 2304000)
    A(f"s_cmp_ge_u32 {s(S_W)}, 8\ns_cbranch_scc1 K1_NOX")
    x_dma(A)
    A("K1_NOX:")
    A(f"s_cmp_eq_u32 {s(S_TYPE)}, 1\ns_cbranch_scc1 K1_UG")
    srd(A, R_B, S_WQ, 41472)
    srd(A, R_C, S_WK, 41472)
    ST(A, 1)
    A(f"s_cmp_ge_u32 {s(S_W)}, 8\ns_cbranch_scc1 K1_Q_LD")
    ln_addr(A)
    A(f"s_waitcnt vmcnt(0)")
    ST(A, 2)
    ln_compute(A)
    ST(A, 3)
    A("s_branch K1_Q_NOLN")
    A("K1_Q_LD:")
    dma_loop(A, R_B, 11, L_WA, "q")
    dma_loop(A, R_C, 11, L_WB, "k")
    A("K1_Q_NOLN:")
    tr_lane(A, V_TR, 288)
    A(f"s_lshl_b32 {s(S_0)}, {s(S_T)}, 6")
    A(f"s_add_u32 {s(S_0)}, {s(S_0)}, {L_WA}")
    A(f"v_add_u32 {v(V_TR)}, {s(S_0)}, {v(V_TR)}")
    A(f"s_mul_i32 {s(S_1)}, {s(S_RT)}, 9216")
    A(f"v_add_u32 {v(V_A3)}, {s(S_1)}, {v(V_L16)}")
    pi_row(A, V_T+8, V_T+9, V_T+10)
    A(f"v_mul_u32_u24 {v(V_T+8)}, 288, {v(V_T+8)}")
    A(f"v_lshrrev_b32 {v(V_T+9)}, 5, {v(V_LANE)}")
    A(f"v_lshl_add_u32 {v(V_T+8)}, {v(V_T+9)}, 4, {v(V_T+8)}")
    A(f"s_mul_i32 {s(S_0)}, {s(S_T)}, {32*288}")
    A(f"s_add_u32 {s(S_0)}, {s(S_0)}, {L_WB}")
    A(f"v_add_u32 {v(V_A2)}, {s(S_0)}, {v(V_T+8)}")
    t = V_T; L = V_LANE
    A(f"v_bfe_u32 {v(t)}, {v(L)}, 2, 1")
    A(f"v_bfe_u32 {v(t+1)}, {v(L)}, 3, 1")
    A(f"v_bfe_u32 {v(t+2)}, {v(L)}, 4, 1")
    A(f"v_and_b32 {v(t+3)}, 3, {v(L)}")
    A(f"v_xor_b32 {v(t+5)}, {v(t+9)}, {v(t)}")
    A(f"v_lshl_add_u32 {v(t+6)}, {v(t)}, 1, {v(t+1)}")
    A(f"v_mad_u32_u24 {v(t+5)}, {v(t+3)}, 36, {v(t+5)}")
    A(f"v_mad_u32_u24 {v(t+5)}, {v(t+2)}, 18, {v(t+5)}")
    A(f"v_mul_u32_u24 {v(t+6)}, 144, {v(t+6)}")
    A(f"v_add_lshl_u32 {v(V_A0)}, {v(t+5)}, {v(t+6)}, 4")
    A(f"s_add_u32 {s(S_2)}, {s(S_GT0)}, {s(S_RT)}")
    A(f"s_mul_i32 {s(S_2)}, {s(S_2)}, {TILE}")
    A(f"s_lshl_b32 {s(S_5)}, {s(S_RBB)}, 1")
    A(f"s_add_u32 {s(S_5)}, {s(S_5)}, {s(S_RT)}")
    A(f"s_waitcnt vmcnt(20) lgkmcnt(0)")
    A("s_barrier")
    ST(A, 4)
    gemm(A, lambda k, sl: tr_reads(k, sl, 288, V_TR), V_A3, L_ACT, V_C)
    ST(A, 5)
    A(f"s_add_u32 {s(S_3)}, {s(S_2)}, {XA_OFF}")
    A("s_waitcnt vmcnt(0)")
    A(f"s_cmp_ge_u32 {s(S_5)}, 125\ns_cbranch_scc1 K1_XS4")
    for T in range(5):
        lab = f"K1_XS{T}"
        A(f"s_cmp_eq_u32 {s(S_T)}, {T}\ns_cbranch_scc0 {lab}")
        A(f"buffer_store_dwordx4 {v(V_B+4*T,4)}, {v(V_A0)}, {s(R_WS,4)}, {s(S_3)} offen offset:{32*T}")
        if T + 5 < 9:
            A(f"buffer_store_dwordx4 {v(V_B+4*(T+5),4)}, {v(V_A0)}, {s(R_WS,4)}, {s(S_3)} offen offset:{32*(T+5)}")
        A(f"{lab}:")
    A("s_nop 7")
    pack8(A, V_AF, V_C); pack8(A, V_AF+4, V_C+8)
    A(f"s_lshl_b32 {s(S_0)}, {s(S_T)}, 11")
    A(f"v_add_u32 {v(V_A1)}, {s(S_0)}, {v(V_A3)}")
    A(f"ds_write_b128 {v(V_A1)}, {v(V_AF,4)} offset:{L_ACT2}")
    A(f"s_cmp_eq_u32 {s(S_T)}, 4\ns_cbranch_scc1 K1_Q_W1")
    A(f"ds_write_b128 {v(V_A1)}, {v(V_AF+4,4)} offset:{L_ACT2+1024}")
    A("K1_Q_W1:")
    A("s_waitcnt lgkmcnt(0)")
    A("s_barrier")
    ST(A, 6)
    gemm(A, lambda k, sl: [f"ds_read_b128 {v(V_AF+4*sl,4)}, {v(V_A2)} offset:{32*k}"], V_A3, L_ACT2, V_C)
    c = 144 ** -0.5 * math.log2(math.e)
    A(f"s_mov_b32 {s(S_1)}, {f32(c)}")
    A(f"s_add_u32 {s(S_3)}, {s(S_2)}, {QP_OFF}")
    A(f"s_add_u32 {s(S_3)}, {s(S_3)}, {s(S_0)}")
    A(f"s_cmp_ge_u32 {s(S_5)}, 125\ns_cbranch_scc1 K1_END")
    for i in range(16): A(f"v_mul_f32 {v(V_C+i)}, {s(S_1)}, {v(V_C+i)}")
    pack8(A, V_AF, V_C); pack8(A, V_AF+4, V_C+8)
    A(f"buffer_store_dwordx4 {v(V_AF,4)}, {v(V_L16)}, {s(R_WS,4)}, {s(S_3)} offen")
    A(f"s_cmp_eq_u32 {s(S_T)}, 4\ns_cbranch_scc1 K1_END")
    A(f"buffer_store_dwordx4 {v(V_AF+4,4)}, {v(V_L16)}, {s(R_WS,4)}, {s(S_3)} offen offset:1024")
    A("s_branch K1_END")
    A("K1_UG:")
    srd(A, R_B, S_WUP, 82944)
    ST(A, 1)
    A(f"s_cmp_ge_u32 {s(S_W)}, 8\ns_cbranch_scc1 K1_U_LD")
    ln_addr(A)
    A(f"s_waitcnt vmcnt(0)")
    ST(A, 2)
    ln_compute(A)
    ST(A, 3)
    A("s_branch K1_U_NOLN")
    A("K1_U_LD:")
    dma_loop(A, R_B, 21, L_WA, "u")
    A("K1_U_NOLN:")
    tr_lane(A, V_A0, 576)
    A(f"s_lshl_b32 {s(S_0)}, {s(S_T)}, 6")
    A(f"s_add_u32 {s(S_0)}, {s(S_0)}, {L_WA + 256}")
    A(f"v_add_u32 {v(V_TR)}, {s(S_0)}, {v(V_A0)}")
    A(f"v_add_u32 {v(V_TR2)}, {80*576}, {v(V_TR)}")
    A(f"s_mul_i32 {s(S_1)}, {s(S_RT)}, 9216")
    A(f"v_add_u32 {v(V_A3)}, {s(S_1)}, {v(V_L16)}")
    k0 = -2.0 * math.sqrt(2.0 / math.pi) * math.log2(math.e)
    k1 = k0 * 0.044715
    A(f"v_mov_b32 {v(V_K0)}, {f32(k1)}")
    A(f"v_mov_b32 {v(V_K0+1)}, {f32(k0)}")
    A("s_setprio 3")
    A(f"s_waitcnt vmcnt(0) lgkmcnt(0)")
    A("s_barrier")
    ST(A, 4)
    gemm(A, lambda k, sl: tr_reads(k, sl, 576, V_TR, V_TR2), V_A3, L_ACT, V_C2)
    G = V_B
    gelu16(A, V_C2, G)
    A(f"s_mul_i32 {s(S_0)}, {s(S_RT)}, 5120")
    A(f"s_lshl_b32 {s(S_1)}, {s(S_T)}, 10")
    A(f"s_add_u32 {s(S_1)}, {s(S_1)}, {s(S_0)}")
    A(f"v_lshrrev_b32 {v(G)}, 1, {v(V_L16)}")
    A(f"v_add_u32 {v(V_A1)}, {s(S_1)}, {v(G)}")
    for kp in range(2):
        c0 = V_C2 + 8 * kp
        o = G + 2 + 2 * kp; tm = G + 8
        A(f"v_pk_add_f32 {v(tm,2)}, {v(c0,2)}, {v(c0+2,2)}")
        A(f"v_pk_add_f32 {v(tm+2,2)}, {v(c0+4,2)}, {v(c0+6,2)}")
        A(f"v_pk_add_f32 {v(tm,2)}, {v(tm,2)}, {v(tm+2,2)}")
        A(f"v_add_f32 {v(o)}, {v(tm)}, {v(tm+1)}")
        A(f"v_mul_f32 {v(tm)}, {f32(0.125)}, {v(o)}")
        for i in range(0, 8, 2): A(f"v_pk_add_f32 {v(tm+2+i,2)}, {v(c0+i,2)}, {v(tm,2)} op_sel_hi:[1,0] neg_lo:[0,1] neg_hi:[0,1]")
        A(f"v_pk_mul_f32 {v(tm,2)}, {v(tm+2,2)}, {v(tm+2,2)}")
        for i in range(2, 8, 2): A(f"v_pk_fma_f32 {v(tm,2)}, {v(tm+2+i,2)}, {v(tm+2+i,2)}, {v(tm,2)}")
        A(f"v_add_f32 {v(o+1)}, {v(tm)}, {v(tm+1)}")
        A(f"ds_write_b64 {v(V_A1)}, {v(o,2)} offset:{L_ACT2 + 512*kp}")
    ST(A, 5)
    A("s_setprio 0")
    A(f"s_lshl_b32 {s(S_2)}, {s(S_RBB)}, 1")
    A(f"s_add_u32 {s(S_2)}, {s(S_2)}, {s(S_RT)}")
    A(f"s_cmp_eq_u32 {s(S_T)}, 0\ns_cbranch_scc0 K1_U_NOU8")
    A(f"s_cmp_ge_u32 {s(S_2)}, 125\ns_cbranch_scc1 K1_U_NOU8")
    pack8(A, V_AF, V_C2)
    A(f"s_add_u32 {s(S_3)}, {s(S_GT0)}, {s(S_RT)}")
    A(f"s_mul_i32 {s(S_3)}, {s(S_3)}, {TILE}")
    A(f"s_add_u32 {s(S_3)}, {s(S_3)}, {U_OFF + 8192}")
    A(f"buffer_store_dwordx4 {v(V_AF,4)}, {v(V_L16)}, {s(R_WS,4)}, {s(S_3)} offen")
    A("K1_U_NOU8:")
    A(f"s_cmp_ge_u32 {s(S_W)}, 8\ns_cbranch_scc1 K1_U_SKIPU")
    A(f"s_lshr_b32 {s(S_1)}, {s(S_W)}, 2")
    A(f"s_and_b32 {s(S_0)}, {s(S_W)}, 3")
    A(f"s_lshl_b32 {s(S_3)}, {s(S_0)}, 6")
    A(f"s_add_u32 {s(S_3)}, {s(S_3)}, {L_WA}")
    A(f"v_add_u32 {v(V_TR)}, {s(S_3)}, {v(V_A0)}")
    A(f"v_add_u32 {v(V_TR2)}, {80*576}, {v(V_TR)}")
    A(f"s_mul_i32 {s(S_3)}, {s(S_1)}, 9216")
    A(f"v_add_u32 {v(V_A3)}, {s(S_3)}, {v(V_L16)}")
    A("s_waitcnt lgkmcnt(0)")
    gemm(A, lambda k, sl: tr_reads(k, sl, 576, V_TR, V_TR2), V_A3, L_ACT, V_C)
    gelu16(A, V_C, G)
    A(f"s_lshl_b32 {s(S_3)}, {s(S_RBB)}, 1")
    A(f"s_add_u32 {s(S_3)}, {s(S_3)}, {s(S_1)}")
    A(f"s_cmp_ge_u32 {s(S_3)}, 125\ns_cbranch_scc1 K1_U_SKIPU")
    pack8(A, V_AF, V_C); pack8(A, V_AF+4, V_C+8)
    A(f"s_add_u32 {s(S_3)}, {s(S_GT0)}, {s(S_1)}")
    A(f"s_mul_i32 {s(S_3)}, {s(S_3)}, {TILE}")
    A(f"s_lshl_b32 {s(S_0)}, {s(S_0)}, 11")
    A(f"s_add_u32 {s(S_3)}, {s(S_3)}, {s(S_0)}")
    A(f"s_add_u32 {s(S_3)}, {s(S_3)}, {U_OFF}")
    A(f"buffer_store_dwordx4 {v(V_AF,4)}, {v(V_L16)}, {s(R_WS,4)}, {s(S_3)} offen")
    A(f"buffer_store_dwordx4 {v(V_AF+4,4)}, {v(V_L16)}, {s(R_WS,4)}, {s(S_3)} offen offset:1024")
    A("K1_U_SKIPU:")
    ST(A, 6)
    A(f"v_and_b32 {v(G)}, 31, {v(V_LANE)}")
    A(f"v_lshlrev_b32 {v(G+1)}, 3, {v(G)}")
    A(f"s_mul_i32 {s(S_0)}, {s(S_RT)}, 5120")
    A(f"v_add_u32 {v(V_A1)}, {s(S_0)}, {v(G+1)}")
    A(f"s_mul_i32 {s(S_0)}, {s(S_W)}, 2560")
    A(f"s_add_u32 {s(S_0)}, {s(S_0)}, {L_SCR}")
    A(f"v_mul_u32_u24 {v(G)}, 80, {v(G)}")
    A(f"v_lshrrev_b32 {v(G+1)}, 5, {v(V_LANE)}")
    A(f"v_lshl_add_u32 {v(G)}, {v(G+1)}, 4, {v(G)}")
    A(f"v_add_u32 {v(V_TR)}, {s(S_0)}, {v(G)}")
    A(f"v_bfe_u32 {v(G+2)}, {v(V_LANE)}, 4, 1")
    A(f"v_bfe_u32 {v(G+3)}, {v(V_LANE)}, 2, 2")
    A(f"v_lshl_add_u32 {v(G+3)}, {v(G+2)}, 4, {v(G+3)}")
    A(f"v_mul_u32_u24 {v(G+3)}, 80, {v(G+3)}")
    A(f"v_lshl_add_u32 {v(G+3)}, {v(G+1)}, 5, {v(G+3)}")
    A(f"v_and_b32 {v(G+4)}, 3, {v(V_LANE)}")
    A(f"v_lshl_add_u32 {v(G+3)}, {v(G+4)}, 3, {v(G+3)}")
    A(f"v_add_u32 {v(V_TR2)}, {s(S_0)}, {v(G+3)}")
    A(f"v_and_b32 {v(G+4)}, 15, {v(V_LANE)}")
    A(f"v_lshl_add_u32 {v(G+4)}, {v(G+1)}, 4, {v(G+4)}")
    A(f"v_lshlrev_b32 {v(G+4)}, 6, {v(G+4)}")
    A(f"v_lshl_add_u32 {v(V_A3)}, {v(G+2)}, 5, {v(G+4)}")
    A("s_waitcnt lgkmcnt(0)")
    A("s_barrier")
    R = G + 4 if False else V_B + 0
    R = V_B
    for j in range(18):
        if j == 12: A("s_waitcnt lgkmcnt(4)")
        A(f"ds_read_b64 {v(R+2*j,2)}, {v(V_A1)} offset:{L_ACT2 + 512 + 256*j}")
    m = V_T; tt = V_T + 2
    A("s_waitcnt lgkmcnt(0)")
    A(f"v_pk_add_f32 {v(m,2)}, {v(R,2)}, {v(R+2,2)}")
    for j in range(2, 18): A(f"v_pk_add_f32 {v(m,2)}, {v(m,2)}, {v(R+2*j,2)}")
    A(f"v_mul_f32 {v(m)}, {f32(1.0/144)}, {v(m)}")
    A(f"v_mul_f32 {v(tt)}, {f32(8.0)}, {v(m)}")
    for j in range(18): A(f"v_sub_f32 {v(R+2*j)}, {v(R+2*j)}, {v(tt)}")
    A(f"v_mul_f32 {v(tt)}, {v(R)}, {v(R)}")
    A(f"v_mul_f32 {v(tt+1)}, {v(R+2)}, {v(R+2)}")
    for j in range(2, 18): A(f"v_fmac_f32 {v(tt + j%2)}, {v(R+2*j)}, {v(R+2*j)}")
    A(f"v_add_f32 {v(tt)}, {v(tt)}, {v(tt+1)}")
    A(f"v_fmac_f32 {v(m+1)}, {f32(0.125)}, {v(tt)}")
    A(f"v_mov_b32 {v(tt)}, {f32(1e-5)}")
    A(f"v_fmac_f32 {v(tt)}, {f32(1.0/144)}, {v(m+1)}")
    A(f"v_rsq_f32 {v(tt)}, {v(tt)}")
    for i in range(0, 16, 2): A(f"v_pk_add_f32 {v(V_C2+i,2)}, {v(V_C2+i,2)}, {v(m,2)} op_sel_hi:[1,0] neg_lo:[0,1] neg_hi:[0,1]")
    for i in range(0, 16, 2): A(f"v_pk_mul_f32 {v(V_C2+i,2)}, {v(V_C2+i,2)}, {v(tt,2)} op_sel_hi:[1,0]")
    pack8(A, V_AF+8, V_C2); pack8(A, V_AF+12, V_C2+8)
    A(f"ds_write_b128 {v(V_TR)}, {v(V_AF+8,4)}")
    A(f"ds_write_b128 {v(V_TR)}, {v(V_AF+12,4)} offset:32")
    A("s_waitcnt lgkmcnt(0)")
    for j in range(4): A(f"ds_read_b64_tr_b16 {v(V_AF+16+2*j,2)}, {v(V_TR2)} offset:{320*j}")
    A(f"s_mul_i32 {s(S_3)}, {s(S_B)}, 127")
    A(f"s_add_u32 {s(S_3)}, {s(S_3)}, {s(S_2)}")
    A(f"s_mul_i32 {s(S_3)}, {s(S_3)}, {TILE}")
    A(f"s_lshl_b32 {s(S_0)}, {s(S_T)}, 11")
    A(f"s_add_u32 {s(S_3)}, {s(S_3)}, {s(S_0)}")
    A(f"s_add_u32 {s(S_3)}, {s(S_3)}, {GB_OFF + TILE - 1024}")
    A(f"s_cmp_ge_u32 {s(S_2)}, 125\ns_cbranch_scc1 K1_END")
    A(f"s_cmp_eq_u32 {s(S_T)}, 0")
    A(f"s_cselect_b32 exec_lo, 0, -1")
    A("s_waitcnt lgkmcnt(0)")
    A(f"buffer_store_dwordx4 {v(V_AF+16,4)}, {v(V_A3)}, {s(R_WS,4)}, {s(S_3)} offen")
    A(f"buffer_store_dwordx4 {v(V_AF+20,4)}, {v(V_A3)}, {s(R_WS,4)}, {s(S_3)} offen offset:16")
    A(f"s_mov_b64 exec, -1")
    A("s_branch K1_END")
    A("K1_WTYPE:")
    A(f"s_lshl_b32 {s(S_5)}, {s(S_B)}, 1")
    A(f"s_add_u32 {s(S_5)}, {s(S_5)}, {s(S_TYPE)}")
    if ST.on: A(f"s_lshl_b32 s100, {s(S_5)}, 3\ns_add_u32 s100, s100, 24")
    srd(A, R_C, S_WM, 82944)
    pi_row(A, V_T+8, V_T+9, V_T+10)
    A(f"v_mul_u32_u24 {v(V_T+8)}, 288, {v(V_T+8)}")
    A(f"v_lshrrev_b32 {v(V_T+9)}, 5, {v(V_LANE)}")
    A(f"v_lshl_add_u32 {v(V_A2)}, {v(V_T+9)}, 4, {v(V_T+8)}")
    A(f"s_mul_i32 {s(S_0)}, {s(S_RT)}, 9216")
    A(f"v_add_u32 {v(V_A3)}, {s(S_0)}, {v(V_L16)}")
    tr_lane(A, V_TR, 288)
    A(f"s_lshl_b32 {s(S_0)}, {s(S_T)}, 6")
    A(f"s_add_u32 {s(S_0)}, {s(S_0)}, {L_WA}")
    A(f"v_add_u32 {v(V_TR)}, {s(S_0)}, {v(V_TR)}")
    A(f"v_add_u32 {v(V_TR2)}, {L_WB - L_WA}, {v(V_TR)}")
    A(f"s_cmp_eq_u32 {s(S_5)}, 3\ns_cbranch_scc1 K1_W_DN")
    A(f"s_lshl_b32 {s(S_3)}, {s(S_5)}, 1")
    A(f"s_add_u32 {s(S_3)}, {s(S_3)}, {s(S_RT)}")
    A(f"s_mul_i32 {s(S_1)}, {s(S_3)}, {32*288}")
    srd(A, R_A, S_WV, 41472)
    srd(A, R_B, S_WAO, 41472)
    for k in range(9):
        A(f"buffer_load_dwordx4 {v(V_B+4*k,4)}, {v(V_A2)}, {s(R_A,4)}, {s(S_1)} offen offset:{32*k}")
    dma_mat(A, R_B, 0, 41472, L_WA, "wa")
    dma_mat(A, R_C, 0, 41472, L_WB, "wb")
    A("s_waitcnt vmcnt(0)")
    A("s_barrier")
    gemm(A, lambda k, sl: tr_reads(k, sl, 288, V_TR), None, 0, V_C, b_ready=True)
    pack8(A, V_AF, V_C); pack8(A, V_AF+4, V_C+8)
    A(f"s_lshl_b32 {s(S_0)}, {s(S_T)}, 11")
    A(f"v_add_u32 {v(V_A1)}, {s(S_0)}, {v(V_A3)}")
    A(f"ds_write_b128 {v(V_A1)}, {v(V_AF,4)} offset:{L_ACT2}")
    A(f"s_cmp_eq_u32 {s(S_T)}, 4\ns_cbranch_scc1 K1_W_W1")
    A(f"ds_write_b128 {v(V_A1)}, {v(V_AF+4,4)} offset:{L_ACT2+1024}")
    A("K1_W_W1:")
    A("s_waitcnt lgkmcnt(0)")
    A("s_barrier")
    A(f"s_cmp_ge_u32 {s(S_3)}, 5\ns_cbranch_scc1 K1_W_CHORES")
    gemm(A, lambda k, sl: tr_reads(k, sl, 288, V_TR2), V_A3, L_ACT2, V_C, swapped=True)
    pack8(A, V_AF, V_C); pack8(A, V_AF+4, V_C+8)
    A(f"s_lshl_b32 {s(S_0)}, {s(S_3)}, 1")
    wf_store(A, S_0, WFA_OFF, "K1_WSA")
    A("s_branch K1_END")
    A("K1_W_CHORES:")
    A(f"s_cmp_ge_u32 {s(S_T)}, 3\ns_cbranch_scc1 K1_W_CH2")
    srd(A, R_A, S_DW, 8928)
    A(f"s_lshl_b32 {s(S_0)}, {s(S_T)}, 6")
    A(f"v_add_u32 {v(V_T)}, {s(S_0)}, {v(V_LANE)}")
    A(f"v_lshlrev_b32 {v(V_T+1)}, 1, {v(V_T)}")
    A(f"v_add_u32 {v(V_T+2)}, {14*288}, {v(V_T+1)}")
    A(f"v_add_u32 {v(V_T+3)}, {28*288}, {v(V_T+1)}")
    A(f"v_mul_u32_u24 {v(V_T+4)}, 80, {v(V_T)}")
    A(f"v_cmp_gt_u32 vcc, 144, {v(V_T)}")
    for i in (0, 1, 18, 19): A(f"v_mov_b32 {v(V_B+i)}, 0")
    A(f"s_and_saveexec_b64 {s(S_0,2)}, vcc")
    for tap in range(31):
        A(f"buffer_load_ushort {v(V_AF + tap)}, {v(V_T + 1 + tap//14)}, {s(R_A,4)}, 0 offen offset:{288*(tap%14)}")
    A(f"s_mov_b32 {s(S_3)}, {WT_OFF}")
    A("s_waitcnt vmcnt(0)")
    for d in range(15): A(f"v_lshl_or_b32 {v(V_B+2+d)}, {v(V_AF+2*d+1)}, 16, {v(V_AF+2*d)}")
    A(f"v_mov_b32 {v(V_B+17)}, {v(V_AF+30)}")
    for q in range(5):
        A(f"buffer_store_dwordx4 {v(V_B+4*q,4)}, {v(V_T+4)}, {s(R_WS,4)}, {s(S_3)} offen offset:{16*q}")
    A(f"s_mov_b64 exec, -1")
    A("s_branch K1_END")
    A("K1_W_CH2:")
    for i in range(4): A(f"v_mov_b32 {v(V_B+i)}, 0")
    A(f"s_cmp_eq_u32 {s(S_T)}, 4\ns_cbranch_scc1 K1_W_CH3")
    A(f"s_mov_b32 {s(S_3)}, {FLAG_OFF}")
    for q in range(8):
        if q == 4: A(f"s_add_u32 {s(S_3)}, {s(S_3)}, 4096")
        A(f"buffer_store_dwordx4 {v(V_B,4)}, {v(V_L16)}, {s(R_WS,4)}, {s(S_3)} offen offset:{1024*(q%4)}")
    A("s_branch K1_END")
    A("K1_W_CH3:")
    for b in range(2):
        for tl in (0, 126):
            base = GB_OFF + (b * 127 + tl) * TILE
            for q in range(9):
                if q % 4 == 0: A(f"s_mov_b32 {s(S_3)}, {base + 1024*q}")
                A(f"buffer_store_dwordx4 {v(V_B,4)}, {v(V_L16)}, {s(R_WS,4)}, {s(S_3)} offen offset:{1024*(q%4)}")
    A("s_branch K1_END")
    A("K1_W_DN:")
    srd(A, R_A, S_WDN, 41472)
    dma_mat(A, R_C, 41472, 41472, L_WB, "wc")
    A(f"s_mov_b32 {s(S_3)}, {s(S_RT)}")
    A("s_waitcnt vmcnt(0)")
    A("s_barrier")
    A("K1_W_DNL:")
    A(f"s_mul_i32 {s(S_1)}, {s(S_3)}, {32*288}")
    for k in range(9):
        A(f"buffer_load_dwordx4 {v(V_B+4*k,4)}, {v(V_A2)}, {s(R_A,4)}, {s(S_1)} offen offset:{32*k}")
    A("s_waitcnt vmcnt(0)")
    gemm(A, lambda k, sl: tr_reads(k, sl, 288, V_TR2), None, 0, V_C, swapped=True, b_ready=True)
    pack8(A, V_AF, V_C); pack8(A, V_AF+4, V_C+8)
    A(f"s_lshl_b32 {s(S_0)}, {s(S_3)}, 1")
    wf_store(A, S_0, WFC_OFF, "K1_WSC")
    A(f"s_add_u32 {s(S_3)}, {s(S_3)}, 2")
    A(f"s_cmp_lt_u32 {s(S_3)}, 5\ns_cbranch_scc1 K1_W_DNL")
    A("K1_END:")
    ST(A, 7)
    if ST.on: A("s_waitcnt vmcnt(0)")
    ST(A, 8)
    ST.dump(A, 9, S_W, 56)
    A("K1_EXIT:")
    A("s_endpgm")
    return A.L

K1_LAUNCH = f"; @launch kernel=k1_kernel grid=(256,1,1) block=(640,1,1) lds={K1_LDS}"
def k1_desc(): return kernel_desc("k1_kernel", NV1, NV1, 102 if ST.on else 64)

if __name__ == '__main__':
    import sys
    if len(sys.argv) > 2: ST.on = True; ST.wg = int(sys.argv[2])
    L, n = fix_hazards(gen_k1(), verbose=False)
    out = [K1_LAUNCH, '.amdgcn_target "amdgcn-amd-amdhsa--gfx950"', '.text'] + L + ['.section .rodata,"a"', k1_desc()]
    open(sys.argv[1], 'w').write("\n".join(out) + "\n")
    print('nops inserted', n, 'lines', len(L))
```

```python
from asmlib import *
from layout2 import *

class Opt:
    split_sm = 4
    d_look = 5
    prio = 2
    fused = False
    no_sm = 0; no_lds = 0; no_dma = 0; no_bar = 0; no_wait = 0; no_exp = 0
OPT = Opt()
ST = Stamps(False, base=64, wg=77, tag="K2")

V_LANE = 1
V_KB, V_VB = 2, 3
V_K, V_V = 4, 5
V_DMA = 6
V_L = [7, 8]
V_X = 9
V_L16 = 10
V_M = 11
V_S = [16, 32]
V_NM = 48
V_P = [64, 72]
V_T = 80
V_E = 88
V_U = 96
V_XR = 104
NV = 112
A_OX = 0
A_OY = 36
A_Q = 72
A_F = 108
NA = 144
S_WS = 4
S_SRD = 8
S_QI, S_KH, S_NT, S_GQ, S_SPLIT, S_VALID = 12, 13, 14, 15, 16, 17
S_SRC, S_SRC2, S_DST, S_PV, S_PK, S_N, S_LB = 18, 19, 20, 21, 22, 23, 24
S_T0, S_T1, S_T2, S_T3 = 25, 26, 27, 28
S_W = 29
S_HB = 30
S_BLK = 31
S_E5, S_E6 = 32, 33
S_GO = 34
S_OV = 35
S_XP, S_OP = 36, 38
R_X, R_O = 40, 44
S_C0, S_C1, S_C2, S_C3 = 48, 49, 50, 51
HALF = 8 * TILE
LDS_BYTES = 163840
SP = 2 * HALF
L_WT = SP
L_MLX = SP + 12288
P0 = 0
P1 = HALF
L_WFC4 = P1 + 27648
L_MLO = P1 + 32256
X0 = 4 * TILE
X1 = HALF + 4 * TILE
L_Y = X0
L_WFA4 = X0 + 18432

def frag(i): return A_F + 4 * i
def k_reads(sidx, toff): return [f"ds_read_b128 {a(frag(sidx),4)}, {v(V_K)} offset:{toff + 32*sidx}"]
def v_reads(f, toff): return [f"ds_read_b64_tr_b16 {a(frag(f)+2*rho,2)}, {v(V_V)} offset:{toff + 2304*rho + 32*f}" for rho in (0, 1)]
def qk_mfma(sidx, par, first_c=None):
    S = V_S[par]
    c = v(S, 16) if sidx else (first_c if first_c is not None else v(V_NM, 16))
    return [f"v_mfma_f32_32x32x16_bf16 {v(S,16)}, {a(frag(sidx),4)}, {a(A_Q+4*sidx,4)}, {c}"]
def pv_mfma(f, par, zero=False):
    P = V_P[par]
    return [f"v_mfma_f32_16x16x32_bf16 {a(A_OX+4*f,4)}, {a(frag(f),4)}, {v(P,4)}, {'0' if zero else a(A_OX+4*f,4)}",
            f"v_mfma_f32_16x16x32_bf16 {a(A_OY+4*f,4)}, {a(frag(f),4)}, {v(P+4,4)}, {'0' if zero else a(A_OY+4*f,4)}"]

SM_ORDER = [0, 4, 1, 5, 2, 6, 3, 7]
def sm_instrs(par):
    S = V_S[par]; Lo = V_L[par]; Ln = V_L[par ^ 1]; P = V_P[par]
    G = []
    for n, g in enumerate(SM_ORDER):
        t0 = V_T + (2 * n) % 8; t1 = t0 + 1
        ins = [f"v_exp_f32 {v(t0)}, {v(S+2*g)}", f"v_exp_f32 {v(t1)}, {v(S+2*g+1)}"]
        if n % 2 == 0 and n > 0:
            pg = SM_ORDER[n - 2]
            ins.append(f"v_permlane16_swap_b32 {v(P+pg)}, {v(P+4+pg)}")
        ins += [f"v_add_f32 {v(Ln)}, {v(Lo if n == 0 else Ln)}, {v(t0)}",
                f"v_cvt_pk_bf16_f32 {v(P+g)}, {v(t0)}, {v(t1)}",
                f"v_add_f32 {v(Ln)}, {v(Ln)}, {v(t1)}"]
        G.append(ins)
    return G
def sm_last_swap(par):
    P = V_P[par]
    return [f"v_permlane16_swap_b32 {v(P+3)}, {v(P+7)}"]

class Stream:
    def __init__(self, A): self.A = A; self.pending = []
    def issue(self, tag, reads):
        for r in reads: self.A(r)
        self.pending.append((tag, len(reads)))
    def wait_for(self, tag):
        idx = [i for i, (t, n) in enumerate(self.pending) if t == tag]
        if not idx: return
        i = idx[-1]
        after = sum(n for t, n in self.pending[i+1:])
        self.A(f"s_waitcnt lgkmcnt({after})")
        self.pending = self.pending[i+1:]

def emit_seq(A, st, groups, nxt, fillers):
    D = OPT.d_look
    allg = groups + nxt
    for n, (tag, mf, rd, pre) in enumerate(groups):
        for f in fillers.get(('pre', n), []): A(f)
        st.wait_for(tag)
        for k, m in enumerate(mf):
            A(m)
            if k == len(mf) - 1 and n + D < len(allg):
                t2, _, rd2, pre2 = allg[n + D]
                for p in pre2: A(p)
                st.issue(t2, rd2)
            for f in fillers.get((n, k), []): A(f)

def qk_group(j, par, toff, pre=None, first_c=None):
    return [(('K', j, s_), qk_mfma(s_, par, first_c), k_reads(s_, toff), (pre if s_ == 0 and pre else [])) for s_ in range(9)]
def pv_group(j, par, toff, pre=None, zero=False):
    return [(('V', j, f), pv_mfma(f, par, zero), v_reads(f, toff), (pre if f == 0 and pre else [])) for f in range(9)]
def upd_k(): return [f"v_add_u32 {v(V_K)}, {s(S_PK)}, {v(V_KB)}"]
def upd_v(): return [f"v_add_u32 {v(V_V)}, {s(S_PV)}, {v(V_VB)}"]

def dma_pair(advance=True):
    r = [f"s_add_u32 m0, {s(S_LB)}, {s(S_DST)}", f"s_add_u32 {s(S_SRC2)}, {s(S_SRC)}, 4096"]
    P = [[f"buffer_load_dwordx4 {v(V_DMA)}, {s(S_SRD,4)}, {s(S_SRC)} offen offset:{1024*k} lds"] for k in range(4)]
    last = [f"s_add_u32 m0, m0, 4096", f"s_mov_b64 exec, 0xffffffff",
            f"buffer_load_dwordx4 {v(V_DMA)}, {s(S_SRD,4)}, {s(S_SRC2)} offen lds", f"s_mov_b64 exec, -1"]
    if advance:
        last += [f"s_add_u32 {s(S_SRC)}, {s(S_SRC)}, {2*TILE}", f"s_add_u32 {s(S_DST)}, {s(S_DST)}, {2*TILE}",
                 f"s_cmp_ge_u32 {s(S_DST)}, {HALF}", f"s_cselect_b32 {s(S_DST)}, 0, {s(S_DST)}"]
    P.append(last)
    P[0] = r + P[0]
    return P

def wt_dma():
    return [f"s_lshl_b32 {s(S_C0)}, {s(S_W)}, 11", f"s_add_u32 m0, {s(S_C0)}, {L_WT}", f"s_add_u32 {s(S_C0)}, {s(S_C0)}, {WT_OFF}",
            f"buffer_load_dwordx4 {v(V_L16)}, {s(S_SRD,4)}, {s(S_C0)} offen lds",
            f"buffer_load_dwordx4 {v(V_L16)}, {s(S_SRD,4)}, {s(S_C0)} offen offset:1024 lds"]
def src_override():
    return [f"s_cmp_eq_u32 {s(S_N)}, 5", f"s_cselect_b32 {s(S_SRC)}, {s(S_E5)}, {s(S_SRC)}",
            f"s_cmp_eq_u32 {s(S_N)}, 6", f"s_cselect_b32 {s(S_SRC)}, {s(S_E6)}, {s(S_SRC)}"]

def check(par, lab):
    Ln = V_L[par ^ 1]
    return [f"v_cmp_nle_f32 vcc, {v(Ln)}, {v(V_X)}"] + sm_last_swap(par) + [f"s_cbranch_vccnz {lab}", f"{lab}_ret:"]

def tile_max(A, S, E):
    A(f"v_max3_f32 {v(E)}, {v(S)}, {v(S+1)}, {v(S+2)}")
    for i in range(3, 15, 2): A(f"v_max3_f32 {v(E)}, {v(E)}, {v(S+i)}, {v(S+i+1)}")
    A(f"v_max_f32 {v(E)}, {v(E)}, {v(S+15)}")
    A(f"v_mov_b32 {v(E+1)}, {v(E)}")
    A(f"v_permlane32_swap_b32 {v(E)}, {v(E+1)}")

def rare_path(A, par, lab):
    S = V_S[par]; Sn = V_S[par ^ 1]; Lo = V_L[par]
    T = V_T; E = V_E
    A(f"{lab}:")
    A("s_nop 15\ns_nop 15\ns_nop 15\ns_nop 15")
    tile_max(A, S, E)
    A(f"v_max3_f32 {v(E)}, {v(E)}, {v(E+1)}, 0")
    A(f"v_sub_f32 {v(E+1)}, 0, {v(E)}")
    A(f"v_exp_f32 {v(E+1)}, {v(E+1)}")
    A(f"v_mov_b32 {v(E+2)}, {v(E+1)}")
    A(f"v_mov_b32 {v(E+3)}, {v(E+1)}")
    A(f"v_permlane16_swap_b32 {v(E+2)}, {v(E+3)}")
    for i in range(72):
        fr = E + 2 if i < 36 else E + 3
        t = T + i % 8
        A(f"v_accvgpr_read_b32 {v(t)}, {a(i)}")
        A(f"v_mul_f32 {v(t)}, {v(t)}, {v(fr)}")
        A(f"v_accvgpr_write_b32 {a(i)}, {v(t)}")
    A(f"v_mul_f32 {v(Lo)}, {v(Lo)}, {v(E+1)}")
    for i in range(16):
        A(f"v_sub_f32 {v(V_NM+i)}, {v(V_NM+i)}, {v(E)}")
        A(f"v_sub_f32 {v(S+i)}, {v(S+i)}, {v(E)}")
        A(f"v_sub_f32 {v(Sn+i)}, {v(Sn+i)}, {v(E)}")
    for g in sm_instrs(par): A.extend(g)
    A.extend(sm_last_swap(par))
    A("s_nop 7")
    A(f"s_branch {lab}_ret")

def place(fl, key, ins): fl.setdefault(key, []).extend(ins)

def spread_qk(fl, base, groups):
    n = len(groups)
    flat = [i for g in groups for i in g]
    per = len(flat) / 9.0
    for k, ins in enumerate(flat):
        place(fl, (base + min(8, int(k / per)), 0), [ins])
def spread_pv(fl, base, groups, start=2):
    flat = [i for g in groups for i in g]
    slots = [(base + f, k) for f in range(start, 9) for k in (0, 1)]
    per = len(flat) / float(len(slots))
    for k, ins in enumerate(flat):
        place(fl, slots[min(len(slots) - 1, int(k / per))], [ins])

def gen_k2():
    A = Asm()
    A(kernel_header("k2_kernel"))
    A(f"s_cmp_ge_u32 s2, 256\ns_cbranch_scc1 K2_END")
    ST(A, 0)
    A(f"s_load_dwordx2 {s(S_WS,2)}, s[0:1], 88")
    A(f"s_load_dwordx2 {s(S_XP,2)}, s[0:1], 0")
    A(f"s_load_dwordx2 {s(S_OP,2)}, s[0:1], 72")
    A(f"v_lshrrev_b32 {v(2)}, 6, v0")
    A(f"v_and_b32 {v(V_LANE)}, 63, v0")
    A(f"v_readfirstlane_b32 {s(S_W)}, {v(2)}")
    A(f"v_lshlrev_b32 {v(V_L16)}, 4, {v(V_LANE)}")
    A(f"s_and_b32 {s(S_T1)}, s2, 7")
    A(f"s_lshr_b32 {s(S_T2)}, s2, 3")
    A(f"s_and_b32 {s(S_SPLIT)}, {s(S_T2)}, 3")
    A(f"s_lshr_b32 {s(S_T2)}, {s(S_T2)}, 2")
    A(f"s_lshl_b32 {s(S_T3)}, {s(S_T1)}, 3")
    A(f"s_add_u32 {s(S_BLK)}, {s(S_T2)}, {s(S_T3)}")
    A(f"s_lshr_b32 {s(S_T1)}, {s(S_BLK)}, 5")
    A(f"s_and_b32 {s(S_T2)}, {s(S_BLK)}, 31")
    A(f"s_and_b32 {s(S_QI)}, {s(S_W)}, 3")
    A(f"s_lshr_b32 {s(S_KH)}, {s(S_W)}, 2")
    A(f"s_lshl_b32 {s(S_T2)}, {s(S_T2)}, 2")
    A(f"s_mul_i32 {s(S_T1)}, {s(S_T1)}, 125")
    A(f"s_add_u32 {s(S_T0)}, {s(S_T1)}, {s(S_T2)}")
    A(f"s_add_u32 {s(S_C0)}, {s(S_T2)}, {s(S_SPLIT)}")
    A(f"s_add_u32 {s(S_T2)}, {s(S_T2)}, {s(S_QI)}")
    A(f"s_cmp_lt_u32 {s(S_T2)}, 125")
    A(f"s_cselect_b32 {s(S_VALID)}, 1, 0")
    A(f"s_add_u32 {s(S_GQ)}, {s(S_T0)}, {s(S_QI)}")
    A(f"s_lshl_b32 {s(S_T2)}, {s(S_KH)}, 1")
    A(f"s_add_u32 {s(S_T0)}, {s(S_T0)}, {s(S_T2)}")
    A(f"s_mul_i32 {s(S_SRC)}, {s(S_T0)}, {TILE}")
    A(f"s_add_u32 {s(S_SRC)}, {s(S_SRC)}, {QP_OFF}")
    A(f"s_mul_i32 {s(S_HB)}, {s(S_KH)}, {HALF}")
    A(f"s_mul_i32 {s(S_T0)}, {s(S_QI)}, 4608")
    A(f"s_add_u32 {s(S_LB)}, {s(S_HB)}, {s(S_T0)}")
    A(f"v_add_u32 {v(V_DMA)}, {s(S_T0)}, {v(V_L16)}")
    A(f"s_mov_b32 {s(S_DST)}, {4*TILE}")
    A(f"s_waitcnt lgkmcnt(0)")
    A(f"s_mov_b32 {s(S_SRD)}, {s(S_WS)}\ns_and_b32 {s(S_SRD+1)}, {s(S_WS+1)}, 0xffff\ns_mov_b32 {s(S_SRD+2)}, {WS_SIZE}\ns_mov_b32 {s(S_SRD+3)}, 0x00020000")
    for p in dma_pair(False): A.extend(p)
    A(f"s_lshl_b32 {s(S_T2)}, {s(S_SPLIT)}, 1")
    A(f"s_add_u32 {s(S_T2)}, {s(S_T2)}, {s(S_KH)}")
    A(f"s_cmp_lt_u32 {s(S_T2)}, 5")
    A(f"s_cselect_b32 {s(S_NT)}, 16, 15")
    A(f"s_max_u32 {s(S_T3)}, {s(S_T2)}, 5")
    A(f"s_sub_u32 {s(S_T3)}, {s(S_T3)}, 5")
    A(f"s_lshl_b32 {s(S_T2)}, {s(S_T2)}, 4")
    A(f"s_sub_u32 {s(S_T2)}, {s(S_T2)}, {s(S_T3)}")
    A(f"s_add_u32 {s(S_T2)}, {s(S_T2)}, {s(S_T1)}")
    A(f"s_mul_i32 {s(S_SRC)}, {s(S_T2)}, {TILE}")
    A(f"s_add_u32 {s(S_SRC)}, {s(S_SRC)}, {XA_OFF}")
    A(f"s_mul_i32 {s(S_T1)}, {s(S_QI)}, 2304")
    A(f"v_add_u32 {v(V_E+1)}, {s(S_T1)}, {v(V_L16)}")
    A(f"s_add_u32 {s(S_T1)}, {s(S_T1)}, {s(S_HB)}")
    A(f"s_add_u32 m0, {s(S_T1)}, {7*TILE}")
    A("s_nop 0")
    A(f"buffer_load_dwordx4 {v(V_E+1)}, {s(S_SRD,4)}, {s(S_SRC)} offen lds")
    A(f"buffer_load_dwordx4 {v(V_E+1)}, {s(S_SRD,4)}, {s(S_SRC)} offen offset:1024 lds")
    A(f"s_mov_b64 exec, 0xffff")
    A(f"buffer_load_dwordx4 {v(V_E+1)}, {s(S_SRD,4)}, {s(S_SRC)} offen offset:2048 lds")
    A(f"s_mov_b64 exec, -1")
    A(f"s_add_u32 {s(S_SRC)}, {s(S_SRC)}, {TILE}")
    A(f"s_mov_b32 {s(S_DST)}, 0")
    A("s_barrier")
    for p in dma_pair(): A.extend(p)
    A(f"s_cmp_lt_u32 {s(S_C0)}, 125")
    A(f"s_cselect_b32 {s(S_OV)}, 1, 0")
    A(f"s_min_u32 {s(S_C0)}, {s(S_C0)}, 124")
    A(f"s_lshr_b32 {s(S_C1)}, {s(S_BLK)}, 5")
    A(f"s_mul_i32 {s(S_C2)}, {s(S_C1)}, 125")
    A(f"s_add_u32 {s(S_GO)}, {s(S_C2)}, {s(S_C0)}")
    A(f"s_mul_i32 {s(S_C2)}, {s(S_C1)}, 127")
    A(f"s_add_u32 {s(S_C2)}, {s(S_C2)}, {s(S_C0)}")
    A(f"s_mul_i32 {s(S_C2)}, {s(S_C2)}, {TILE}")
    A(f"s_add_u32 {s(S_C2)}, {s(S_C2)}, {GB_OFF}")
    A(f"s_add_u32 {s(S_C3)}, {s(S_C2)}, {2*TILE}")
    A(f"s_cmp_lt_u32 {s(S_QI)}, 2")
    A(f"s_cselect_b32 {s(S_C3)}, {s(S_C3)}, {WFC_OFF + 36864 - 9216}")
    A(f"s_cmp_eq_u32 {s(S_KH)}, 0")
    A(f"s_cselect_b32 {s(S_E5)}, {WFC_OFF}, {s(S_C2)}")
    A(f"s_cselect_b32 {s(S_E6)}, {WFC_OFF + 2*TILE}, {s(S_C3)}")
    A(f"s_mov_b32 {s(R_X)}, {s(S_XP)}\ns_and_b32 {s(R_X+1)}, {s(S_XP+1)}, 0xffff\ns_mov_b32 {s(R_X+2)}, 2304000\ns_mov_b32 {s(R_X+3)}, 0x00020000")
    A(f"s_mov_b32 {s(R_O)}, {s(S_OP)}\ns_and_b32 {s(R_O+1)}, {s(S_OP+1)}, 0xffff\ns_mov_b32 {s(R_O+2)}, 2304000\ns_mov_b32 {s(R_O+3)}, 0x00020000")
    A(f"s_cmp_eq_u32 {s(S_VALID)}, 0\ns_cbranch_scc1 K2_IDLE")
    L = V_LANE; t = V_T
    A(f"v_bfe_u32 {v(t)}, {v(L)}, 2, 1")
    A(f"v_bfe_u32 {v(t+1)}, {v(L)}, 3, 1")
    A(f"v_bfe_u32 {v(t+2)}, {v(L)}, 4, 1")
    A(f"v_and_b32 {v(t+3)}, 3, {v(L)}")
    A(f"v_lshrrev_b32 {v(t+4)}, 5, {v(L)}")
    A(f"v_xor_b32 {v(t+5)}, {v(t+4)}, {v(t)}")
    A(f"v_lshl_add_u32 {v(t+6)}, {v(t)}, 1, {v(t+1)}")
    A(f"v_mad_u32_u24 {v(t+5)}, {v(t+3)}, 36, {v(t+5)}")
    A(f"v_mad_u32_u24 {v(t+5)}, {v(t+2)}, 18, {v(t+5)}")
    A(f"v_mul_u32_u24 {v(t+6)}, 144, {v(t+6)}")
    A(f"v_add_lshl_u32 {v(t+5)}, {v(t+5)}, {v(t+6)}, 4")
    A(f"v_add_u32 {v(V_KB)}, {s(S_HB)}, {v(t+5)}")
    A(f"v_bfe_u32 {v(t)}, {v(L)}, 2, 2")
    A(f"v_bfe_u32 {v(t+1)}, {v(L)}, 1, 1")
    A(f"v_xor_b32 {v(t+1)}, {v(t+1)}, {v(t+4)}")
    A(f"v_mad_u32_u24 {v(t+1)}, {v(t)}, 36, {v(t+1)}")
    A(f"v_mad_u32_u24 {v(t+1)}, {v(t+2)}, 18, {v(t+1)}")
    A(f"v_mul_u32_u24 {v(t+5)}, 288, {v(t+4)}")
    A(f"v_add_lshl_u32 {v(t+1)}, {v(t+1)}, {v(t+5)}, 4")
    A(f"v_and_b32 {v(t+5)}, 1, {v(L)}")
    A(f"v_lshl_add_u32 {v(t+1)}, {v(t+5)}, 3, {v(t+1)}")
    A(f"v_add_u32 {v(V_VB)}, {s(S_HB)}, {v(t+1)}")
    A(f"s_lshr_b32 {s(S_T0)}, {s(S_QI)}, 1")
    A(f"s_mul_i32 {s(S_T0)}, {s(S_T0)}, {HALF}")
    A(f"s_and_b32 {s(S_T1)}, {s(S_QI)}, 1")
    A(f"s_mul_i32 {s(S_T1)}, {s(S_T1)}, {TILE}")
    A(f"s_add_u32 {s(S_T0)}, {s(S_T0)}, {s(S_T1)}")
    A(f"v_add_u32 {v(V_E)}, {s(S_T0)}, {v(V_L16)}")
    A(f"v_mov_b32 {v(V_L[0])}, 0")
    A(f"v_mov_b32 {v(V_X)}, 0x5f800000")
    A(f"s_mov_b32 {s(S_PV)}, {6*TILE}")
    A(f"s_mov_b32 {s(S_PK)}, {6*TILE}")
    A.extend(upd_k()); A.extend(upd_v())
    A(f"s_mov_b32 {s(S_PK)}, 0")
    if OPT.prio == 1:
        A(f"s_cmp_eq_u32 {s(S_KH)}, 0\ns_cbranch_scc1 K2_NOPRIO\ns_setprio 1\nK2_NOPRIO:")
    ST(A, 1)
    A(f"s_waitcnt vmcnt(5)")
    A(f"s_barrier")
    ST(A, 2)
    st = Stream(A)
    D = OPT.d_look
    g_qk0 = qk_group(0, 0, TILE, first_c="0")
    g_qk1 = qk_group(1, 1, 0)
    g_pv0 = pv_group(0, 0, TILE, zero=True)
    g_body_start = qk_group(2, 0, TILE)
    for k in range(9):
        st.issue(('Q', k), [f"ds_read_b128 {a(A_Q+4*k,4)}, {v(V_E)} offset:{4*TILE + 1024*k}"])
        if k < D: st.issue(g_qk0[k][0], g_qk0[k][2])
    fl = {}
    for k, p in enumerate(dma_pair()): place(fl, (k, 0), p)
    for k in range(9): place(fl, ('pre', k), [])
    emit_seq(A, st, g_qk0, [], fl)
    A(f"s_waitcnt vmcnt(5)")
    A(f"s_barrier")
    A.extend(upd_k())
    for k in range(D): st.issue(g_qk1[k][0], g_qk1[k][2])
    S = V_S[0]; E = V_E
    tile_max(A, S, E)
    A(f"v_max_f32 {v(E)}, {v(E)}, {v(E+1)}")
    for i in range(16): A(f"v_sub_f32 {v(V_NM+i)}, 0, {v(E)}")
    for i in range(16): A(f"v_sub_f32 {v(S+i)}, {v(S+i)}, {v(E)}")
    fl = {}
    spread_qk(fl, 0, sm_instrs(0))
    place(fl, ('pre', 9), sm_last_swap(0))
    place(fl, (2, 0), wt_dma())
    for k, p in enumerate(dma_pair()): place(fl, (9 + k, 0), p)
    h = OPT.split_sm
    if h: spread_pv(fl, 9, sm_instrs(1)[:h])
    emit_seq(A, st, g_qk1 + g_pv0, g_body_start, fl)
    A(f"s_mov_b32 {s(S_N)}, 0")
    A(f"s_mov_b32 {s(S_PV)}, 0")
    A(f"s_mov_b32 {s(S_PK)}, {2*TILE}")
    pend_at_top = list(st.pending)
    ST(A, 3)
    A("K2_LOOP:")
    A(f"s_waitcnt vmcnt(5)")
    A(f"s_barrier")
    gA = qk_group(2, 0, TILE)
    gB = pv_group(1, 1, 0, pre=upd_v())
    gC = qk_group(3, 1, 0, pre=upd_k())
    gD = pv_group(2, 0, TILE)
    gN = qk_group(2, 0, TILE)
    fl = {}
    spread_qk(fl, 0, sm_instrs(1)[h:])
    place(fl, ('pre', 9), check(1, "K2_RARE_A"))
    dp = dma_pair()
    for k, p in enumerate(dp): place(fl, ((0, 2, 4, 6, 8)[k], 0), p)
    if h: spread_pv(fl, 9, sm_instrs(0)[:h])
    spread_qk(fl, 18, sm_instrs(0)[h:])
    place(fl, ('pre', 27), check(0, "K2_RARE_B"))
    if h: spread_pv(fl, 27, sm_instrs(1)[:h])
    place(fl, (27, 0), [f"s_mov_b32 {s(S_PV)}, {s(S_PK)}", f"s_add_u32 {s(S_PK)}, {s(S_PK)}, {2*TILE}"])
    place(fl, (27, 1), [f"s_cmp_ge_u32 {s(S_PK)}, {HALF}", f"s_cselect_b32 {s(S_PK)}, 0, {s(S_PK)}", f"s_add_u32 {s(S_N)}, {s(S_N)}, 1"])
    place(fl, (28, 1), src_override())
    if OPT.prio == 2:
        for ph in range(4): fl[('pre', 9*ph)] = [f"s_setprio {3-ph}"] + fl.get(('pre', 9*ph), [])
    if OPT.prio == 3:
        for ph in range(4): fl[('pre', 9*ph)] = [f"s_setprio {1 - ph%2}"] + fl.get(('pre', 9*ph), [])
    if OPT.prio == 4:
        for ph, pos in enumerate((0, 12, 22, 30)): fl[('pre', pos)] = [f"s_setprio {3-ph}"] + fl.get(('pre', pos), [])
    emit_seq(A, st, gA + gB + gC + gD, gN, fl)
    assert [n for _, n in st.pending] == [n for _, n in pend_at_top], (st.pending, pend_at_top)
    i0 = A.L.index("K2_LOOP:")
    body = A.L[i0+1:]
    def keep(l):
        if OPT.no_sm and l.startswith(('v_exp', 'v_add_f32', 'v_cvt_pk', 'v_permlane')): return False
        if OPT.no_exp and l.startswith('v_exp'): return False
        if OPT.no_lds and l.startswith('ds_read'): return False
        if OPT.no_dma and l.startswith('buffer_load'): return False
        if OPT.no_bar and l.startswith('s_barrier'): return False
        if OPT.no_wait and l.startswith('s_waitcnt lgkm'): return False
        return True
    A.L[i0+1:] = [l for l in body if keep(l)]
    A(f"s_cmp_lt_u32 {s(S_N)}, 7")
    A(f"s_cbranch_scc1 K2_LOOP")
    ST(A, 4)
    A(f"s_cmp_eq_u32 {s(S_NT)}, 16")
    A(f"s_cbranch_scc0 K2_T15")
    st.pending = []
    A(f"s_waitcnt lgkmcnt(0)")
    A.extend(upd_v())
    gT = pv_group(15, 1, 0)
    for n in range(7): st.issue(gT[n][0], gT[n][2])
    for g in sm_instrs(1)[h:]: A.extend(g)
    A.extend(check(1, "K2_RARE_T"))
    for n, (tag, mf, rd, pre) in enumerate(gT):
        st.wait_for(tag)
        A.extend(mf)
        if n + 7 < 9: st.issue(gT[n+7][0], gT[n+7][2])
    A(f"v_mov_b32 {v(V_L[1])}, {v(V_L[0])}")
    A("K2_T15:")
    ST(A, 5)
    gen_epilogue(A)
    A("K2_END2:")
    if ST.on: A("s_waitcnt vmcnt(0)")
    ST(A, 8)
    ST.dump(A, 9, S_W, 56)
    A("K2_END:")
    A("s_endpgm")
    A("K2_IDLE:")
    for i_ in range(1, 6): ST(A, i_)
    A(f"s_waitcnt vmcnt(5)")
    A(f"s_barrier")
    for p in dma_pair(): A.extend(p)
    A(f"s_waitcnt vmcnt(5)")
    A(f"s_barrier")
    A.extend(wt_dma())
    for p in dma_pair(): A.extend(p)
    A(f"s_mov_b32 {s(S_N)}, 0")
    A("K2_IDLE_L:")
    A(f"s_waitcnt vmcnt(5)")
    A(f"s_barrier")
    for p in dma_pair(): A.extend(p)
    A(f"s_add_u32 {s(S_N)}, {s(S_N)}, 1")
    A.extend(src_override())
    A(f"s_cmp_lt_u32 {s(S_N)}, 7")
    A(f"s_cbranch_scc1 K2_IDLE_L")
    early_loads(A)
    A(f"s_waitcnt vmcnt(0)")
    A(f"s_barrier")
    A(f"s_barrier")
    A("s_branch K2_E2W")
    rare_path(A, 1, "K2_RARE_A")
    rare_path(A, 0, "K2_RARE_B")
    rare_path(A, 1, "K2_RARE_T")
    return A.L

def early_loads(A):
    A(f"s_mul_i32 {s(S_C0)}, {s(S_GO)}, {TILE}")
    A(f"s_lshl_b32 {s(S_C1)}, {s(S_W)}, 10")
    A(f"s_add_u32 {s(S_C2)}, {s(S_C0)}, {U_OFF + 8192}")
    A(f"s_add_u32 {s(S_C1)}, {s(S_C1)}, {s(S_C0)}")
    A(f"s_add_u32 {s(S_C1)}, {s(S_C1)}, {U_OFF}")
    A(f"buffer_load_dwordx4 {v(V_U,4)}, {v(V_L16)}, {s(S_SRD,4)}, {s(S_C1)} offen")
    A(f"buffer_load_dwordx4 {v(V_U+4,4)}, {v(V_L16)}, {s(S_SRD,4)}, {s(S_C2)} offen")
    A(f"v_and_b32 {v(V_K)}, 31, {v(V_LANE)}")
    A(f"v_mul_u32_u24 {v(V_K)}, 288, {v(V_K)}")
    A(f"v_lshrrev_b32 {v(V_V)}, 5, {v(V_LANE)}")
    A(f"v_lshl_add_u32 {v(V_K)}, {v(V_V)}, 4, {v(V_K)}")
    A(f"s_lshl_b32 {s(S_C1)}, {s(S_W)}, 6")
    A(f"s_add_u32 {s(S_PK)}, {s(S_C0)}, {s(S_C1)}")
    A(f"buffer_load_dwordx4 {v(V_XR,4)}, {v(V_K)}, {s(R_X,4)}, {s(S_PK)} offen")
    A(f"buffer_load_dwordx4 {v(V_XR+4,4)}, {v(V_K)}, {s(R_X,4)}, {s(S_PK)} offen offset:32")

V_UN = 60
def gen_epilogue(A):
    E = V_E; T = V_T; LF = V_L[1]
    A("s_setprio 0")
    early_loads(A)
    A(f"v_mov_b32 {v(E+1)}, {v(LF)}")
    A(f"v_sub_f32 {v(E)}, 0, {v(V_NM)}")
    A(f"v_permlane32_swap_b32 {v(E+1)}, {v(LF)}")
    A(f"v_add_f32 {v(E+1)}, {v(E+1)}, {v(LF)}")
    A(f"s_add_u32 {s(S_T0)}, {s(S_QI)}, 4")
    A(f"s_mul_i32 {s(S_T0)}, {s(S_T0)}, {TILE}")
    A(f"s_sub_u32 {s(S_T1)}, {HALF}, {s(S_HB)}")
    A(f"s_add_u32 {s(S_T1)}, {s(S_T1)}, {s(S_T0)}")
    A(f"s_add_u32 {s(S_T0)}, {s(S_T0)}, {s(S_HB)}")
    A(f"v_add_u32 {v(E+3)}, {s(S_T0)}, {v(V_L16)}")
    A(f"v_add_u32 {v(E+4)}, {s(S_T1)}, {v(V_L16)}")
    A(f"v_lshrrev_b32 {v(E+5)}, 1, {v(V_L16)}")
    A(f"s_lshl_b32 {s(S_T0)}, {s(S_W)}, 9")
    A(f"s_xor_b32 {s(S_T1)}, {s(S_T0)}, 2048")
    A(f"s_add_u32 {s(S_T0)}, {s(S_T0)}, {L_MLX}")
    A(f"s_add_u32 {s(S_T1)}, {s(S_T1)}, {L_MLX}")
    A(f"v_add_u32 {v(E+2)}, {s(S_T0)}, {v(E+5)}")
    A(f"v_add_u32 {v(T+7)}, {s(S_T1)}, {v(E+5)}")
    A(f"ds_write_b64 {v(E+2)}, {v(E,2)}")
    A(f"s_waitcnt vmcnt(4) lgkmcnt(0)")
    A(f"s_barrier")
    A(f"s_cmp_eq_u32 {s(S_KH)}, 0")
    A(f"s_cbranch_scc0 K2_EPI1")
    R = 16; W = 52
    for kh in (0, 1):
        if kh == 1: A("K2_EPI1:")
        keep = A_OX if kh == 0 else A_OY
        send = A_OY if kh == 0 else A_OX
        for q in range(9): A(f"ds_write_b128 {v(E+3)}, {a(send+4*q,4)} offset:{1024*q}")
        A(f"ds_read_b64 {v(E+6,2)}, {v(T+7)}")
        A(f"s_waitcnt lgkmcnt(0)")
        A(f"s_barrier")
        for q in range(9): A(f"ds_read_b128 {v(R+4*q,4)}, {v(E+4)} offset:{1024*q}")
        A(f"v_max_f32 {v(T)}, {v(E)}, {v(E+6)}")
        A(f"v_sub_f32 {v(T+2)}, {v(E)}, {v(T)}")
        A(f"v_sub_f32 {v(T+4)}, {v(E+6)}, {v(T)}")
        A(f"v_exp_f32 {v(T+2)}, {v(T+2)}")
        A(f"v_exp_f32 {v(T+4)}, {v(T+4)}")
        A(f"v_mul_f32 {v(T+1)}, {v(E+1)}, {v(T+2)}")
        A(f"v_fmac_f32 {v(T+1)}, {v(E+7)}, {v(T+4)}")
        A(f"v_rcp_f32 {v(T+6)}, {v(T+1)}")
        A(f"v_mul_f32 {v(T+2)}, {v(T+2)}, {v(T+6)}")
        A(f"v_mul_f32 {v(T+4)}, {v(T+4)}, {v(T+6)}")
        A(f"v_mov_b32 {v(T+3)}, {v(T+2)}\nv_mov_b32 {v(T+5)}, {v(T+4)}")
        A(f"v_permlane16_swap_b32 {v(T+2)}, {v(T+3)}")
        A(f"v_permlane16_swap_b32 {v(T+4)}, {v(T+5)}")
        sel = "op_sel:[0,0] op_sel_hi:[1,0]" if kh == 0 else "op_sel:[0,1] op_sel_hi:[1,1]"
        sel3 = "op_sel:[0,0,0] op_sel_hi:[1,0,1]" if kh == 0 else "op_sel:[0,1,0] op_sel_hi:[1,1,1]"
        for u in range(5):
            n = 8 if u < 4 else 4
            for i in range(n): A(f"v_accvgpr_read_b32 {v(W+i)}, {a(keep+8*u+i)}")
            for i in range(0, n, 2): A(f"v_pk_mul_f32 {v(W+i,2)}, {v(W+i,2)}, {v(T+2,2)} {sel}")
            A(f"s_waitcnt lgkmcnt({max(0, 7-2*u)})")
            for i in range(0, n, 2): A(f"v_pk_fma_f32 {v(W+i,2)}, {v(R+8*u+i,2)}, {v(T+4,2)}, {v(W+i,2)} {sel3}")
            pk = V_UN + 4 + 4 * u if u < 4 else V_UN
            for i in range(n // 2): A(f"v_cvt_pk_bf16_f32 {v(pk+i)}, {v(W+2*i)}, {v(W+2*i+1)}")
            if u < 4:
                A(f"v_permlane16_swap_b32 {v(pk)}, {v(pk+2)}")
                A(f"v_permlane16_swap_b32 {v(pk+1)}, {v(pk+3)}")
        if kh == 0: A("s_branch K2_E2")
    A("K2_E2:")
    A(f"v_and_b32 {v(E+2)}, 0x2f, {v(V_LANE)}")
    A(f"v_lshlrev_b32 {v(E+2)}, 4, {v(E+2)}")
    A(f"s_lshl_b32 {s(S_T0)}, {s(S_KH)}, 8")
    A(f"v_add_u32 {v(E+2)}, {s(S_T0)}, {v(E+2)}")
    A(f"v_bfe_u32 {v(E+3)}, {v(V_LANE)}, 4, 1")
    A(f"v_lshl_add_u32 {v(E+4)}, {v(E+3)}, 3, {v(E+2)}")
    A(f"v_lshl_add_u32 {v(E+2)}, {v(E+3)}, 10, {v(E+2)}")
    A(f"s_cmp_eq_u32 {s(S_QI)}, {s(S_SPLIT)}")
    A(f"s_cbranch_scc1 K2_E2W")
    A(f"s_lshl_b32 {s(S_T2)}, {s(S_GQ)}, 2")
    A(f"s_add_u32 {s(S_T2)}, {s(S_T2)}, {s(S_SPLIT)}")
    A(f"s_mul_i32 {s(S_T3)}, {s(S_T2)}, {TILE}")
    A(f"s_add_u32 {s(S_T3)}, {s(S_T3)}, {PART_OFF}")
    A(f"s_add_u32 {s(S_T1)}, {s(S_T3)}, 4096")
    A(f"s_add_u32 {s(S_T0)}, {s(S_T3)}, 8192")
    A(f"s_lshl_b32 {s(S_T2)}, {s(S_T2)}, 8")
    A(f"s_add_u32 {s(S_T2)}, {s(S_T2)}, {ML_OFF}")
    for u in range(4):
        A(f"buffer_store_dwordx4 {v(V_UN+4+4*u,4)}, {v(E+2)}, {s(S_SRD,4)}, {s(S_T3 if u < 2 else S_T1)} offen offset:{2048*(u%2)} sc1")
    A(f"buffer_store_dwordx2 {v(V_UN,2)}, {v(E+4)}, {s(S_SRD,4)}, {s(S_T0)} offen sc1")
    A(f"s_cmp_eq_u32 {s(S_KH)}, 0\ns_cbranch_scc0 K2_E2W")
    A(f"s_mov_b64 exec, 0xffffffff")
    A(f"buffer_store_dwordx2 {v(T,2)}, {v(E+5)}, {s(S_SRD,4)}, {s(S_T2)} offen sc1")
    A(f"s_mov_b64 exec, -1")
    A("K2_E2W:")
    A(f"s_waitcnt vmcnt(0) lgkmcnt(0)")
    A(f"s_barrier")
    ST(A, 6)
    A(f"s_lshl_b32 {s(S_PV)}, {s(S_BLK)}, 7")
    A(f"s_add_u32 {s(S_PV)}, {s(S_PV)}, {FLAG_OFF}")
    A(f"v_mov_b32 {v(V_M)}, 0")
    A(f"s_cmp_eq_u32 {s(S_W)}, 6\ns_cbranch_scc0 K2_NOSIG")
    A(f"v_mov_b32 {v(V_X)}, 1")
    A(f"s_mov_b64 exec, 1")
    A(f"buffer_atomic_add {v(V_X)}, {v(V_M)}, {s(S_SRD,4)}, {s(S_PV)} offen sc1")
    A(f"s_mov_b64 exec, -1")
    A("K2_NOSIG:")
    A(f"s_cmp_eq_u32 {s(S_OV)}, 0\ns_cbranch_scc1 K2_END2")
    A(f"s_cmp_eq_u32 {s(S_QI)}, {s(S_SPLIT)}")
    A(f"s_cbranch_scc0 K2_NOOWN")
    for u in range(4): A(f"ds_write_b128 {v(E+2)}, {v(V_UN+4+4*u,4)} offset:{L_Y + 2048*u}")
    A(f"ds_write_b64 {v(E+4)}, {v(V_UN,2)} offset:{L_Y + 8192}")
    A(f"v_add_u32 {v(E+5)}, {L_MLO}, {v(E+5)}")
    A(f"ds_write_b64 {v(E+5)}, {v(T,2)}")
    A("K2_NOOWN:")
    A(f"s_mul_i32 {s(S_T0)}, {s(S_KH)}, {2*TILE}")
    A(f"s_add_u32 {s(S_SRC)}, {s(S_T0)}, {WFA_OFF}")
    A(f"s_sub_u32 {s(S_DST)}, {X1}, {s(S_HB)}")
    A(f"s_add_u32 {s(S_DST)}, {s(S_DST)}, {s(S_T0)}")
    for p in dma_pair(False): A.extend(p)
    A(f"s_cmp_eq_u32 {s(S_W)}, 7\ns_cbranch_scc0 K2_NOW4")
    A(f"s_mov_b32 {s(S_SRC)}, {WFA_OFF + 36864 - 3*4608}")
    A(f"s_mov_b32 {s(S_LB)}, {L_WFA4}")
    A(f"s_mov_b32 {s(S_DST)}, 0")
    for p in dma_pair(False): A.extend(p)
    A("K2_NOW4:")
    cB = 16
    cD = 42
    cA = 64
    AB = [E, E+1, E+2, E+3]; AW = E + 4; SH = E + 5; WA = E + 6; RA = E + 7
    L = V_LANE
    A(f"v_lshrrev_b32 {v(T)}, 2, {v(L)}")
    A(f"v_and_b32 {v(T+1)}, 3, {v(L)}")
    A(f"v_lshlrev_b32 {v(T+2)}, 6, {v(T)}")
    A(f"v_lshl_add_u32 {v(T+2)}, {v(T+1)}, 3, {v(T+2)}")
    A(f"s_lshl_b32 {s(S_T0)}, {s(S_W)}, 10")
    A(f"s_add_u32 {s(S_T1)}, {s(S_T0)}, {P1 + 32}")
    A(f"v_add_u32 {v(AB[0])}, {s(S_T1)}, {v(T+2)}")
    A(f"s_mov_b32 {s(S_T2)}, 9152")
    for k in (1, 2, 3):
        A(f"v_add_u32 {v(T+3)}, {4+k}, {v(T+1)}")
        A(f"v_lshrrev_b32 {v(T+3)}, 3, {v(T+3)}")
        A(f"v_mad_u32_u24 {v(AB[k])}, {v(T+3)}, {s(S_T2)}, {v(AB[0])}")
    A(f"v_sub_u32 {v(T+3)}, 3, {v(T+1)}")
    A(f"v_and_b32 {v(SH)}, 1, {v(T+3)}")
    A(f"v_lshlrev_b32 {v(SH)}, 4, {v(SH)}")
    A(f"v_lshrrev_b32 {v(T+3)}, 1, {v(T+3)}")
    A(f"v_mul_u32_u24 {v(T+4)}, 80, {v(T)}")
    A(f"v_lshl_add_u32 {v(T+4)}, {v(T+3)}, 2, {v(T+4)}")
    A(f"s_mul_i32 {s(S_T1)}, {s(S_W)}, 1280")
    A(f"s_add_u32 {s(S_T1)}, {s(S_T1)}, {L_WT}")
    A(f"v_add_u32 {v(AW)}, {s(S_T1)}, {v(T+4)}")
    A(f"v_and_b32 {v(T+3)}, 1, {v(L)}")
    A(f"v_lshlrev_b32 {v(T+3)}, 3, {v(T+3)}")
    A(f"v_xor_b32 {v(T+3)}, {v(T+3)}, {v(T)}")
    A(f"v_lshlrev_b32 {v(T+3)}, 2, {v(T+3)}")
    A(f"v_lshl_add_u32 {v(T+3)}, {v(T+1)}, 8, {v(T+3)}")
    A(f"s_add_u32 {s(S_T1)}, {s(S_T0)}, {P1}")
    A(f"v_add_u32 {v(WA)}, {s(S_T1)}, {v(T+3)}")
    A(f"v_bfe_u32 {v(T+3)}, {v(L)}, 2, 1")
    A(f"v_lshrrev_b32 {v(T+4)}, 5, {v(L)}")
    A(f"v_xor_b32 {v(T+3)}, {v(T+3)}, {v(T+4)}")
    A(f"v_lshlrev_b32 {v(T+3)}, 5, {v(T+3)}")
    A(f"v_and_b32 {v(T+4)}, 15, {v(L)}")
    A(f"v_lshl_add_u32 {v(T+3)}, {v(T+4)}, 6, {v(T+3)}")
    A(f"v_bfe_u32 {v(T+4)}, {v(L)}, 4, 1")
    A(f"v_mul_u32_u24 {v(T+4)}, 9216, {v(T+4)}")
    A(f"v_add3_u32 {v(RA)}, {v(T+3)}, {v(T+4)}, {s(S_T1)}")
    A(f"v_add_u32 {v(V_V)}, {s(S_T0)}, {v(V_L16)}")
    A(f"v_mov_b32 {v(V_DMA)}, {v(V_V)}")
    A(f"s_mov_b32 {s(S_N)}, 0")
    A("K2_CONV:")
    A("s_waitcnt lgkmcnt(0)")
    def bread(kap):
        if kap == 0: r, o = AB[0], 0
        elif kap < 4: r, o = AB[kap], 8*kap
        elif kap <= 8: r, o = AB[0], 8*kap + 9152
        elif kap < 12: r, o = AB[kap-8], 8*kap + 9152
        else: r, o = AB[0], 96 + 18304
        return f"ds_read_b64 {v(cB+2*kap,2)}, {v(r)} offset:{o}"
    for k in range(9): A(f"ds_read2_b32 {v(cD+2*k,2)}, {v(AW)} offset0:{2*k} offset1:{2*k+1}")
    A(f"ds_read_b32 {v(cD+18)}, {v(AW)} offset:72")
    for kap in (0, 4, 1, 5, 2): A(bread(kap))
    A("s_waitcnt lgkmcnt(5)")
    for kap in (6, 3, 7, 8, 9, 10, 11, 12): A(bread(kap))
    for m in range(18): A(f"v_alignbit_b32 {v(cD+m)}, {v(cD+m+1)}, {v(cD+m)}, {v(SH)}")
    A("s_waitcnt lgkmcnt(0)")
    for k in range(9):
        A(f"v_mfma_f32_4x4x4_16b_bf16 {v(cA,4)}, {v(cD+2*k,2)}, {v(cB+2*k,2)}, {v(cA,4) if k else '0'}")
        A(f"v_mfma_f32_4x4x4_16b_bf16 {v(cA+4,4)}, {v(cD+2*k,2)}, {v(cB+2*(k+4),2)}, {v(cA+4,4) if k else '0'}")
    for i in range(4): A(f"ds_write_b32 {v(WA)}, {v(cA+i)} offset:{64*i}")
    for i in range(4): A(f"ds_write_b32 {v(WA)}, {v(cA+4+i)} offset:{9216 + 64*i}")
    for j in range(4):
        A(f"v_lshlrev_b32 {v(cB+2*j)}, 16, {v(V_U+j)}")
        A(f"v_and_b32 {v(cB+2*j+1)}, 0xffff0000, {v(V_U+j)}")
    A("s_waitcnt lgkmcnt(0)")
    A(f"ds_read_b128 {v(cB+8,4)}, {v(RA)}")
    A(f"ds_read_b128 {v(cB+12,4)}, {v(RA)} offset:16")
    A("s_waitcnt lgkmcnt(0)")
    for j in range(4): A(f"v_pk_mul_f32 {v(cB+2*j,2)}, {v(cB+2*j,2)}, {v(cB+8+2*j,2)}")
    for j in range(4): A(f"v_cvt_pk_bf16_f32 {v(cB+16+j)}, {v(cB+2*j)}, {v(cB+2*j+1)}")
    A(f"ds_write_b128 {v(V_DMA)}, {v(cB+16,4)} offset:{L_Y + 9216}")
    A(f"s_add_u32 {s(S_N)}, {s(S_N)}, {s(S_W)}")
    A(f"s_cmp_eq_u32 {s(S_N)}, 5\ns_cbranch_scc0 K2_CONV_E")
    for r in AB + [WA, RA, V_DMA]: A(f"v_add_u32 {v(r)}, 3072, {v(r)}")
    A(f"v_add_u32 {v(AW)}, 3840, {v(AW)}")
    for j in range(4): A(f"v_mov_b32 {v(V_U+j)}, {v(V_U+4+j)}")
    A("s_branch K2_CONV")
    A("K2_CONV_E:")
    A(f"s_cmp_eq_u32 {s(S_W)}, 6\ns_cbranch_scc0 K2_NOPOLL")
    A(f"s_mov_b32 {s(S_N)}, 0")
    A("K2_POLL:")
    A(f"buffer_load_dword {v(V_X)}, {v(V_M)}, {s(S_SRD,4)}, {s(S_PV)} offen sc1")
    A("s_waitcnt vmcnt(0)")
    A(f"v_readfirstlane_b32 {s(S_T0)}, {v(V_X)}")
    A(f"s_add_u32 {s(S_N)}, {s(S_N)}, 1")
    A(f"s_cmp_ge_u32 {s(S_T0)}, 4\ns_cbranch_scc1 K2_NOPOLL")
    A("s_sleep 1")
    A(f"s_cmp_lt_u32 {s(S_N)}, 400000\ns_cbranch_scc1 K2_POLL")
    A("K2_NOPOLL:")
    A(f"s_lshl_b32 {s(S_T0)}, {s(S_GO)}, 2")
    for r in range(3):
        A(f"s_add_u32 {s(S_C0+r)}, {s(S_SPLIT)}, {r+1}")
        A(f"s_and_b32 {s(S_C0+r)}, {s(S_C0+r)}, 3")
        A(f"s_add_u32 {s(S_C0+r)}, {s(S_C0+r)}, {s(S_T0)}")
    A(f"v_and_b32 {v(T)}, 31, {v(L)}")
    A(f"v_lshlrev_b32 {v(E)}, 3, {v(T)}")
    A(f"v_add_u32 {v(E+1)}, {L_MLO}, {v(E)}")
    A(f"v_and_b32 {v(T)}, 15, {v(L)}")
    A(f"v_lshrrev_b32 {v(T+1)}, 5, {v(L)}")
    A(f"v_lshl_add_u32 {v(T)}, {v(T+1)}, 4, {v(T)}")
    A(f"v_lshlrev_b32 {v(T)}, 4, {v(T)}")
    A(f"s_mul_i32 {s(S_T1)}, {s(S_W)}, {TILE}")
    A(f"s_mov_b32 {s(S_T3)}, 1024")
    A(f"s_cmp_eq_u32 {s(S_W)}, 4")
    A(f"s_cselect_b32 {s(S_T3)}, 512, {s(S_T3)}")
    A(f"s_cselect_b32 {s(S_T2)}, {L_WFC4}, {s(S_T1)}")
    A(f"s_cselect_b64 vcc, -1, 0")
    A(f"s_add_u32 {s(S_T1)}, {s(S_T1)}, {X1}")
    A(f"s_cmp_eq_u32 {s(S_W)}, 4")
    A(f"s_cselect_b32 {s(S_T1)}, {L_WFA4}, {s(S_T1)}")
    A(f"v_cndmask_b32 {v(T)}, {v(V_L16)}, {v(T)}, vcc")
    A(f"v_add_u32 {v(E+2)}, {s(S_T2)}, {v(T)}")
    A(f"v_add_u32 {v(E+3)}, {s(S_T1)}, {v(T)}")
    A("s_waitcnt lgkmcnt(0)")
    A("s_barrier")
    ST(A, 7)
    PT = 16
    ML = 48
    for r in range(3):
        A(f"s_lshl_b32 {s(S_T0)}, {s(S_C0+r)}, 8")
        A(f"s_add_u32 {s(S_T0)}, {s(S_T0)}, {ML_OFF}")
        A(f"buffer_load_dwordx2 {v(ML+2*r,2)}, {v(E)}, {s(S_SRD,4)}, {s(S_T0)} offen sc1")
    for r in range(3):
        A(f"s_mul_i32 {s(S_C0+r)}, {s(S_C0+r)}, {TILE}")
        A(f"s_add_u32 {s(S_C0+r)}, {s(S_C0+r)}, {PART_OFF}")
        A(f"buffer_load_dwordx4 {v(PT+4*r,4)}, {v(V_V)}, {s(S_SRD,4)}, {s(S_C0+r)} offen sc1")
    A(f"s_cmp_eq_u32 {s(S_W)}, 7\ns_cbranch_scc0 K2_NOU8")
    for r in range(3):
        A(f"buffer_load_dwordx4 {v(PT+12+4*r,4)}, {v(V_V)}, {s(S_SRD,4)}, {s(S_C0+r)} offen offset:1024 sc1")
    A("K2_NOU8:")
    A(f"ds_read_b64 {v(ML+6,2)}, {v(E+1)}")
    A(f"ds_read_b128 {v(PT+24,4)}, {v(V_V)} offset:{L_Y}")
    A(f"ds_read_b128 {v(PT+28,4)}, {v(V_V)} offset:{L_Y + 1024}")
    ACC = 64
    def fgemm(addr, ybase, first):
        seq = []
        for k in range(9):
            seq.append([f"ds_read_b128 {a(A_F+4*k,4)}, {v(addr)}", f"ds_read_b128 {a(A_Q+4*k,4)}, {v(V_L16)} offset:{ybase + 1024*k}",
                        f"v_add_u32 {v(addr)}, {s(S_T3)}, {v(addr)}"])
        for k in range(6): A.extend(seq[k])
        issued = 6
        for k in range(9):
            A(f"s_waitcnt lgkmcnt({2*(issued-k-1)})")
            A(f"v_mfma_f32_32x32x16_bf16 {v(ACC,16)}, {a(A_F+4*k,4)}, {a(A_Q+4*k,4)}, {'0' if (first and k == 0) else v(ACC,16)}")
            if issued < 9: A.extend(seq[issued]); issued += 1
    A(f"s_cmp_ge_u32 {s(S_W)}, 5\ns_cbranch_scc1 K2_NOG1")
    A("s_waitcnt lgkmcnt(0)")
    fgemm(E+2, L_Y + 9216, True)
    A("K2_NOG1:")
    A("s_waitcnt vmcnt(0) lgkmcnt(0)")
    A(f"v_max_f32 {v(T)}, {v(ML)}, {v(ML+2)}")
    A(f"v_max3_f32 {v(T)}, {v(T)}, {v(ML+4)}, {v(ML+6)}")
    for sp in range(4): A(f"v_sub_f32 {v(ML+2*sp)}, {v(ML+2*sp)}, {v(T)}")
    for sp in range(4): A(f"v_exp_f32 {v(ML+2*sp)}, {v(ML+2*sp)}")
    for sp in range(4): A(f"v_mul_f32 {v(ML+2*sp)}, {v(ML+2*sp)}, {v(ML+2*sp+1)}")
    A(f"v_add_f32 {v(T)}, {v(ML)}, {v(ML+2)}")
    A(f"v_add_f32 {v(T+1)}, {v(ML+4)}, {v(ML+6)}")
    A(f"v_add_f32 {v(T)}, {v(T)}, {v(T+1)}")
    A(f"v_rcp_f32 {v(T)}, {v(T)}")
    for sp in range(4): A(f"v_mul_f32 {v(ML+2*sp)}, {v(ML+2*sp)}, {v(T)}")
    A(f"s_mov_b32 {s(S_N)}, 0")
    A("K2_COMB:")
    srcs = [PT, PT+4, PT+8, PT+24]
    for j in range(4):
        for sp in range(4):
            tt = T + 2 + 2 * (sp % 2)
            A(f"v_lshlrev_b32 {v(tt)}, 16, {v(srcs[sp]+j)}")
            A(f"v_and_b32 {v(tt+1)}, 0xffff0000, {v(srcs[sp]+j)}")
            if sp == 0: A(f"v_pk_mul_f32 {v(T,2)}, {v(tt,2)}, {v(ML,2)} op_sel_hi:[1,0]")
            else: A(f"v_pk_fma_f32 {v(T,2)}, {v(tt,2)}, {v(ML+2*sp,2)}, {v(T,2)} op_sel_hi:[1,0,1]")
        A(f"v_cvt_pk_bf16_f32 {v(56+j)}, {v(T)}, {v(T+1)}")
    A(f"ds_write_b128 {v(V_V)}, {v(56,4)} offset:{L_Y}")
    A(f"s_add_u32 {s(S_N)}, {s(S_N)}, {s(S_W)}")
    A(f"s_cmp_eq_u32 {s(S_N)}, 7\ns_cbranch_scc0 K2_COMB_E")
    for i in range(12): A(f"v_mov_b32 {v(PT+i)}, {v(PT+12+i)}")
    for i in range(4): A(f"v_mov_b32 {v(PT+24+i)}, {v(PT+28+i)}")
    A(f"v_add_u32 {v(V_V)}, 1024, {v(V_V)}")
    A("s_branch K2_COMB")
    A("K2_COMB_E:")
    A("s_waitcnt lgkmcnt(0)")
    A("s_barrier")
    A(f"s_cmp_ge_u32 {s(S_W)}, 5\ns_cbranch_scc1 K2_END2")
    fgemm(E+3, L_Y, False)
    for kp in range(2):
        for j in range(4):
            A(f"v_lshlrev_b32 {v(PT+8*kp+2*j)}, 16, {v(V_XR+4*kp+j)}")
            A(f"v_and_b32 {v(PT+8*kp+2*j+1)}, 0xffff0000, {v(V_XR+4*kp+j)}")
    for i in range(0, 16, 2): A(f"v_pk_add_f32 {v(PT+i,2)}, {v(PT+i,2)}, {v(ACC+i,2)}")
    for i in range(8): A(f"v_cvt_pk_bf16_f32 {v(V_XR+i)}, {v(PT+2*i)}, {v(PT+2*i+1)}")
    A(f"buffer_store_dwordx4 {v(V_XR,4)}, {v(V_K)}, {s(R_O,4)}, {s(S_PK)} offen")
    A(f"s_cmp_eq_u32 {s(S_W)}, 4\ns_cbranch_scc1 K2_END2")
    A(f"buffer_store_dwordx4 {v(V_XR+4,4)}, {v(V_K)}, {s(R_O,4)}, {s(S_PK)} offen offset:32")

K2_LAUNCH = f"; @launch kernel=k2_kernel grid=(256,1,1) block=(512,1,1) lds={LDS_BYTES}"
def k2_desc(): return kernel_desc("k2_kernel", NV + NA, NV, 102 if ST.on else 64)

if __name__ == '__main__':
    import sys
    for a_ in sys.argv[2:]:
        if a_ == 'st': ST.on = True
        else:
            k_, v_ = a_.split('='); setattr(OPT, k_, int(v_))
    L, n = fix_hazards(gen_k2(), verbose=False)
    out = [K2_LAUNCH, '.amdgcn_target "amdgcn-amd-amdhsa--gfx950"', '.text'] + L + ['.section .rodata,"a"', k2_desc()]
    open(sys.argv[1], 'w').write("\n".join(out) + "\n")
    print('nops inserted', n, 'lines', len(L))
```

```python
TILE = 9216
XA_OFF   = 0x4000
QP_OFF   = 0x248000
PART_OFF = 0x490000
ML_OFF   = 0xD60000
U_OFF    = 0xDA0000
GB_OFF   = 0xFE0000
WFA_OFF  = 0x1230000
WFC_OFF  = 0x123C000
WT_OFF   = 0x1248000
FLAG_OFF = 0x124C000
WS_SIZE  = 0x1300000
assert GB_OFF + 2*127*TILE <= WFA_OFF
```

```python
import sys
from asmlib import *
import k1b, k2c
HEADER = open('standalone__conformer_family_branchformer__speech.s.ref').read().split('; Override launch')[0]
def build(path, opts):
    for o in opts:
        if o == 'st': k2c.ST.on = True
        elif o.startswith('st1='): k1b.ST.on = True; k1b.ST.wg = int(o[4:])
        elif o == 'abs': k1b.ST.on = True; k2c.ST.on = True; k1b.ST.abs = ([0,1,2,4,5,6,8], 512, 0); k2c.ST.abs = ([0,1,2,3,4,5,6,7,8], 0, 7)
        elif o == 'mm': k1b.ST.on = True; k2c.ST.on = True; k1b.ST.mm = (512, 's100', 's_cmp_ge_u32 s100, 24\ns_cbranch_scc1 K1_SEL\ns_cmp_eq_u32 s44, 4\ns_cbranch_scc0 K1_NOST\ns_mul_i32 s101, s2, 37\ns_and_b32 s101, s101, 0x30\ns_cmp_eq_u32 s101, 0\ns_cbranch_scc0 K1_NOST\nK1_SEL:'); k2c.ST.mm = (0, '0', 's_cmp_eq_u32 s29, 0\ns_cbranch_scc0 K2_NOST\ns_mul_i32 s101, s2, 37\ns_and_b32 s101, s101, 0x30\ns_cmp_eq_u32 s101, 0\ns_cbranch_scc0 K2_NOST')
        elif o.startswith('wg='): k2c.ST.wg = int(o[3:])
        else:
            k_, v_ = o.split('='); setattr(k2c.OPT, k_, int(v_))
    L1, n1 = fix_hazards(k1b.gen_k1()); L2, n2 = fix_hazards(k2c.gen_k2())
    out = [HEADER.rstrip(), k1b.K1_LAUNCH, k2c.K2_LAUNCH, '.amdgcn_target "amdgcn-amd-amdhsa--gfx950"', '.text'] + L1 + L2 + \
          ['.section .rodata,"a"', k1b.k1_desc(), k2c.k2_desc()]
    open(path, 'w').write("\n".join(out) + "\n")
    print('lines', len(L1), len(L2), 'nops', n1, n2)
if __name__ == '__main__':
    build(sys.argv[1], sys.argv[2:])
```

```python
import re

def v(i, n=1): return f"v{i}" if n == 1 else f"v[{i}:{i+n-1}]"
def a(i, n=1): return f"a{i}" if n == 1 else f"a[{i}:{i+n-1}]"
def s(i, n=1): return f"s{i}" if n == 1 else f"s[{i}:{i+n-1}]"

_REG = re.compile(r'^(-|abs\()?([vas])(?:(\d+)|\[(\d+):(\d+)\])\)?$')

def parse_reg(tok):
    t = tok.strip()
    if t.startswith('-'): t = t[1:]
    if t.startswith('|') and t.endswith('|'): t = t[1:-1]
    if t.startswith('abs(') and t.endswith(')'): t = t[4:-1]
    if t == 'vcc': return [('s', 'vcc')]
    if t in ('vcc_lo', 'vcc_hi'): return [('s', 'vcc')]
    if t == 'exec': return [('s', 'exec')]
    if t == 'm0': return [('s', 'm0')]
    m = re.match(r'^([vas])(?:(\d+)|\[(\d+):(\d+)\])$', t)
    if not m: return []
    k = m.group(1)
    if m.group(2) is not None: return [(k, int(m.group(2)))]
    return [(k, i) for i in range(int(m.group(3)), int(m.group(4)) + 1)]

TRANS = ('v_exp_f32', 'v_log_f32', 'v_rcp_f32', 'v_rsq_f32', 'v_sqrt_f32', 'v_sin_f32', 'v_cos_f32', 'v_rcp_iflag_f32')

def split_ops(txt):
    ops = []; depth = 0; cur = ''
    for ch in txt:
        if ch in '[(': depth += 1
        if ch in '])': depth -= 1
        if ch == ',' and depth == 0:
            ops.append(cur.strip()); cur = ''
        else: cur += ch
    if cur.strip(): ops.append(cur.strip())
    return ops

class Ins:
    __slots__ = ('text', 'mn', 'rd', 'wr', 'kind', 'passes', 'srcc', 'ab', 'states', 'dpp', 'label', 'target')
    def __init__(self, text):
        self.text = text
        t = text.split(';')[0].strip()
        self.label = None; self.target = None
        self.rd = set(); self.wr = set(); self.kind = 'other'; self.passes = 0; self.srcc = set(); self.ab = set(); self.states = 1; self.dpp = False
        if t.endswith(':'):
            self.mn = ''; self.kind = 'label'; self.label = t[:-1]; self.states = 0; return
        if not t or t.startswith('.'):
            self.mn = ''; self.kind = 'dir'; self.states = 0; return
        parts = t.split(None, 1)
        mn = parts[0]; self.mn = mn
        rest = parts[1] if len(parts) > 1 else ''
        ops = split_ops(rest)
        mods = ''
        if ops:
            last = ops[-1].split()
            if len(last) > 1:
                ops[-1] = last[0]; mods = ' '.join(last[1:])
        R = [parse_reg(o) for o in ops]
        flat = lambda L: set(x for l in L for x in l)
        if mn == 's_nop':
            self.kind = 'nop'; self.states = int(ops[0], 0) + 1
        elif mn.startswith('v_mfma'):
            self.kind = 'mfma'
            self.passes = 8 if '32x32x16' in mn else 4 if '16x16x32' in mn else 2 if '4x4x4' in mn else None
            assert self.passes, mn
            self.wr = set(R[0]); self.ab = set(R[1]) | set(R[2]); self.srcc = set(R[3]); self.rd = self.ab | self.srcc
        elif mn.startswith('v_'):
            self.kind = 'trans' if mn.replace('_e32', '').replace('_e64', '') in TRANS else 'valu'
            if 'dpp' in mn or 'quad_perm' in mods or 'row_' in mods: self.dpp = True
            if mn.startswith('v_permlane') and 'swap' in mn:
                self.kind = 'permlane'; self.rd = flat(R); self.wr = flat(R)
            elif mn.startswith('v_cmp'):
                self.wr = set(R[0]); self.rd = flat(R[1:])
            elif mn.startswith(('v_add_co', 'v_sub_co', 'v_addc_co', 'v_subb_co', 'v_subrev_co')):
                self.wr = set(R[0]) | set(R[1]); self.rd = flat(R[2:])
            elif mn.startswith('v_nop'):
                self.kind = 'nop'
            else:
                self.wr = set(R[0]); self.rd = flat(R[1:])
                if mn.startswith(('v_fmac', 'v_mac', 'v_pk_fmac', 'v_dot2c')) or self.dpp: self.rd |= set(R[0])
                if mn.startswith('v_cndmask') and len(ops) == 3: self.rd.add(('s', 'vcc'))
                if mn.startswith(('v_readfirstlane', 'v_readlane')): self.kind = 'readlane'
        elif mn.startswith('ds_'):
            self.kind = 'ds'
            if mn.startswith(('ds_read', 'ds_bpermute', 'ds_permute', 'ds_swizzle')) or '_rtn' in mn:
                self.wr = set(R[0]); self.rd = flat(R[1:])
            else: self.rd = flat(R)
        elif mn.startswith(('buffer_', 'global_', 'flat_')):
            self.kind = 'vmem'
            if ' lds' in (' ' + mods) or '_lds_' in mn:
                self.kind = 'dma'; self.rd = flat(R) | {('s', 'm0')}
            elif 'load' in mn:
                self.wr = set(R[0]); self.rd = flat(R[1:])
            elif 'atomic' in mn and 'sc0' in mods:
                self.wr = set(R[0]); self.rd = flat(R)
            elif mn in ('buffer_wbl2', 'buffer_inv'):
                pass
            else:
                self.rd = flat(R)
                if 'x4' in mn or 'x3' in mn:
                    self.kind = 'wstore'
                    self.ab = set(R[0]) if mn.startswith('buffer') else set(R[1])
        elif mn.startswith('s_'):
            self.kind = 'salu'
            if mn.startswith(('s_cbranch', 's_branch')):
                self.kind = 'branch'; self.target = ops[0]
            elif mn.startswith(('s_cmp', 's_waitcnt', 's_barrier', 's_endpgm', 's_setprio', 's_sleep', 's_bitcmp')):
                self.rd = flat(R)
            else:
                self.wr = set(R[0]) if R else set(); self.rd = flat(R[1:])
                if 'saveexec' in mn: self.wr.add(('s', 'exec'))
        else:
            raise ValueError('unknown instr ' + text)

VALUK = ('valu', 'trans', 'permlane', 'readlane')
XD = {2: 5, 4: 8, 8: 12, 16: 20}
XC = {2: 4, 4: 6, 8: 10, 16: 18}
XW = {2: 1, 4: 3, 8: 7, 16: 15}

def need(p, c):
    n = 0
    pv = p.kind in VALUK; cv = c.kind in VALUK
    pw_v = {r for r in p.wr if r[0] != 's'}; pw_s = {r for r in p.wr if r[0] == 's'}
    if pv:
        if c.kind == 'mfma' and (pw_v & c.rd): n = max(n, 2)
        if c.kind == 'permlane' and (pw_v & c.rd): n = max(n, 2)
        if cv and c.dpp and (pw_v & c.rd): n = max(n, 2)
        if c.kind == 'readlane' and (pw_v & c.rd): n = max(n, 1)
        if p.kind == 'trans' and cv and c.kind != 'trans' and (pw_v & c.rd): n = max(n, 1)
        if p.kind == 'trans' and c.kind == 'trans' and (pw_v & c.rd): n = max(n, 1)
        if pw_s:
            if cv and (pw_s & c.rd): n = max(n, 4 if c.kind == 'readlane' else 2)
            if c.kind in ('vmem', 'dma', 'wstore') and (pw_s & c.rd): n = max(n, 5)
            if ('s', 'exec') in pw_s and c.kind == 'mfma': n = max(n, 4)
    if p.kind == 'mfma':
        P = p.passes
        if c.kind == 'mfma':
            if p.wr & c.ab: n = max(n, XD[P])
            if p.wr & c.srcc:
                if p.wr == c.srcc and c.passes == P: n = max(n, 2 if P == 2 else 0)
                else: n = max(n, XC[P])
            elif p.wr & c.wr: n = max(n, XC[P])
        elif cv:
            if p.wr & (c.rd | c.wr): n = max(n, XD[P])
            if p.srcc & c.wr: n = max(n, XW[P])
        elif c.kind in ('ds', 'vmem', 'dma', 'wstore'):
            if p.wr & (c.rd | c.wr): n = max(n, XD[P])
    if p.kind == 'salu' and ('s', 'm0') in p.wr and c.kind == 'dma': n = max(n, 1)
    if p.kind == 'wstore' and (p.ab & c.wr): n = max(n, 2 if cv else 1)
    return n

class Asm:
    def __init__(self):
        self.L = []
        self.nlab = 0
    def __call__(self, txt):
        for line in txt.split('\n'):
            line = line.strip()
            if line: self.L.append(line)
    def label(self, base='L'):
        self.nlab += 1
        return f"{base}_{self.nlab}"
    def extend(self, lines):
        for l in lines: self(l)

def fix_hazards(lines, verbose=False):
    ins = [Ins(l) for l in lines]
    out = []
    def required(hist, c):
        dist = 0; worst = 0
        for p in reversed(hist):
            if dist >= 20: break
            if p.states == 0: continue
            n = need(p, c)
            if n > dist: worst = max(worst, n - dist)
            dist += p.states
        return worst
    hist = []
    ninserted = 0
    for c in ins:
        if c.kind not in ('label', 'dir'):
            w = required(hist, c)
            while w > 0:
                k = min(w, 16)
                nop = Ins(f"s_nop {k-1}")
                out.append(nop); hist.append(nop); w -= k; ninserted += 1
                if verbose: print('  inserted', nop.text, 'before', c.text)
        out.append(c); hist.append(c)
        if c.mn in ('s_branch', 's_endpgm', 's_setpc_b64'):
            hist = []
    labpos = {c.label: i for i, c in enumerate(out) if c.kind == 'label'}
    for i, c in enumerate(out):
        if c.kind == 'branch' and c.target in labpos:
            h = []
            j = i
            tot = 0
            while j >= 0 and tot < 24:
                if out[j].mn in ('s_branch', 's_endpgm') and j != i: break
                h.insert(0, out[j]); tot += out[j].states; j -= 1
            j = labpos[c.target]; tot = 0
            while j < len(out) and tot < 24:
                t = out[j]
                if t.kind not in ('label', 'dir'):
                    w = required(h, t)
                    if w > 0:
                        raise RuntimeError(f"hazard across branch {c.text} -> {t.text}: need {w} more states")
                h.append(t); tot += t.states; j += 1
                if t.mn in ('s_branch', 's_endpgm'): break
    return [c.text for c in out], ninserted

def kernel_header(name):
    return f""".globl {name}
.p2align 8
.type {name},@function
{name}:"""

def kernel_desc(name, vgpr, accum, sgpr=96):
    return f""".p2align 6
.amdhsa_kernel {name}
  .amdhsa_next_free_vgpr {vgpr}
  .amdhsa_next_free_sgpr {sgpr}
  .amdhsa_accum_offset {accum}
  .amdhsa_group_segment_fixed_size 0
  .amdhsa_kernarg_size 96
  .amdhsa_user_sgpr_count 2
  .amdhsa_user_sgpr_kernarg_segment_ptr 1
  .amdhsa_system_sgpr_workgroup_id_x 1
.end_amdhsa_kernel"""

class Stamps:
    def __init__(self, on, base=60, wg=77, tag="X"):
        self.on = on; self.base = base; self.wg = wg; self.tag = tag
    def __call__(self, A, i):
        if not self.on: return
        b = self.base + 4 * i
        A(f"s_memtime {s(b,2)}")
        A(f"s_memrealtime {s(b+2,2)}")
        A("s_waitcnt lgkmcnt(0)")
    def dump_abs(self, A, n, wave_sgpr, tmp, back, slot0):
        if not self.on: return
        A(f"s_load_dwordx2 {s(tmp+4,2)}, s[0:1], 80")
        A("s_waitcnt lgkmcnt(0)")
        A(f"s_add_u32 {s(tmp)}, {s(tmp+4)}, {back}\ns_addc_u32 {s(tmp+1)}, {s(tmp+5)}, 0\ns_and_b32 {s(tmp+1)}, {s(tmp+1)}, 0xffff\ns_mov_b32 {s(tmp+2)}, 256\ns_mov_b32 {s(tmp+3)}, 0x00020000")
        A(f"s_cmp_eq_u32 s2, {self.wg}\ns_cbranch_scc0 {self.tag}_NOST")
        A(f"s_cmp_eq_u32 {s(wave_sgpr)}, 0\ns_cbranch_scc0 {self.tag}_NOST")
        A("v_mov_b32 v2, 0")
        for k, i in enumerate(n):
            b = self.base + 4 * i
            A(f"v_mov_b32 v3, {s(b+2)}")
            A(f"buffer_store_dword v3, v2, {s(tmp,4)}, 0 offen offset:{4*(slot0+k)}")
        A(f"{self.tag}_NOST:")
    def dump(self, A, n, wave_sgpr, tmp, maxrow=8):
        if getattr(self, 'abs', None): return self.dump_abs(A, self.abs[0], wave_sgpr, tmp, self.abs[1], self.abs[2])
        if not self.on: return
        A(f"s_load_dwordx2 {s(tmp+4,2)}, s[0:1], 80")
        A("s_waitcnt lgkmcnt(0)")
        A(f"s_mov_b32 {s(tmp)}, {s(tmp+4)}\ns_and_b32 {s(tmp+1)}, {s(tmp+5)}, 0xffff\ns_mov_b32 {s(tmp+2)}, 256\ns_mov_b32 {s(tmp+3)}, 0x00020000")
        A(f"s_cmp_eq_u32 s2, {self.wg}\ns_cbranch_scc0 {self.tag}_NOST")
        A(f"s_lshl_b32 {s(tmp+4)}, {s(wave_sgpr)}, 5")
        A("v_mov_b32 v2, 0")
        for i in range(1, n):
            b = self.base + 4 * i
            A(f"s_sub_u32 {s(tmp+5)}, {s(b)}, {s(self.base)}")
            A(f"s_sub_u32 {s(tmp+6)}, {s(b+2)}, {s(self.base+2)}")
            A(f"s_lshl_b32 {s(tmp+6)}, {s(tmp+6)}, 20")
            A(f"s_or_b32 {s(tmp+5)}, {s(tmp+5)}, {s(tmp+6)}")
            A(f"v_mov_b32 v3, {s(tmp+5)}")
            A(f"buffer_store_dword v3, v2, {s(tmp,4)}, {s(tmp+4)} offen offset:{4*(i-1)}")
        A(f"{self.tag}_NOST:")
```

```python
import re

def v(i, n=1): return f"v{i}" if n == 1 else f"v[{i}:{i+n-1}]"
def a(i, n=1): return f"a{i}" if n == 1 else f"a[{i}:{i+n-1}]"
def s(i, n=1): return f"s{i}" if n == 1 else f"s[{i}:{i+n-1}]"

_REG = re.compile(r'^(-|abs\()?([vas])(?:(\d+)|\[(\d+):(\d+)\])\)?$')

def parse_reg(tok):
    t = tok.strip()
    if t.startswith('-'): t = t[1:]
    if t.startswith('|') and t.endswith('|'): t = t[1:-1]
    if t.startswith('abs(') and t.endswith(')'): t = t[4:-1]
    if t == 'vcc': return [('s', 'vcc')]
    if t in ('vcc_lo', 'vcc_hi'): return [('s', 'vcc')]
    if t == 'exec': return [('s', 'exec')]
    if t == 'm0': return [('s', 'm0')]
    m = re.match(r'^([vas])(?:(\d+)|\[(\d+):(\d+)\])$', t)
    if not m: return []
    k = m.group(1)
    if m.group(2) is not None: return [(k, int(m.group(2)))]
    return [(k, i) for i in range(int(m.group(3)), int(m.group(4)) + 1)]

TRANS = ('v_exp_f32', 'v_log_f32', 'v_rcp_f32', 'v_rsq_f32', 'v_sqrt_f32', 'v_sin_f32', 'v_cos_f32', 'v_rcp_iflag_f32')

def split_ops(txt):
    ops = []; depth = 0; cur = ''
    for ch in txt:
        if ch in '[(': depth += 1
        if ch in '])': depth -= 1
        if ch == ',' and depth == 0:
            ops.append(cur.strip()); cur = ''
        else: cur += ch
    if cur.strip(): ops.append(cur.strip())
    return ops

class Ins:
    __slots__ = ('text', 'mn', 'rd', 'wr', 'kind', 'passes', 'srcc', 'ab', 'states', 'dpp', 'label', 'target')
    def __init__(self, text):
        self.text = text
        t = text.split(';')[0].strip()
        self.label = None; self.target = None
        self.rd = set(); self.wr = set(); self.kind = 'other'; self.passes = 0; self.srcc = set(); self.ab = set(); self.states = 1; self.dpp = False
        if t.endswith(':'):
            self.mn = ''; self.kind = 'label'; self.label = t[:-1]; self.states = 0; return
        if not t or t.startswith('.'):
            self.mn = ''; self.kind = 'dir'; self.states = 0; return
        parts = t.split(None, 1)
        mn = parts[0]; self.mn = mn
        rest = parts[1] if len(parts) > 1 else ''
        ops = split_ops(rest)
        mods = ''
        if ops:
            last = ops[-1].split()
            if len(last) > 1:
                ops[-1] = last[0]; mods = ' '.join(last[1:])
        R = [parse_reg(o) for o in ops]
        flat = lambda L: set(x for l in L for x in l)
        if mn == 's_nop':
            self.kind = 'nop'; self.states = int(ops[0], 0) + 1
        elif mn.startswith('v_mfma'):
            self.kind = 'mfma'
            self.passes = 8 if '32x32x16' in mn else 4 if '16x16x32' in mn else 2 if '4x4x4' in mn else None
            assert self.passes, mn
            self.wr = set(R[0]); self.ab = set(R[1]) | set(R[2]); self.srcc = set(R[3]); self.rd = self.ab | self.srcc
        elif mn.startswith('v_'):
            self.kind = 'trans' if mn.replace('_e32', '').replace('_e64', '') in TRANS else 'valu'
            if 'dpp' in mn or 'quad_perm' in mods or 'row_' in mods: self.dpp = True
            if mn.startswith('v_permlane') and 'swap' in mn:
                self.kind = 'permlane'; self.rd = flat(R); self.wr = flat(R)
            elif mn.startswith('v_cmp'):
                self.wr = set(R[0]); self.rd = flat(R[1:])
            elif mn.startswith(('v_add_co', 'v_sub_co', 'v_addc_co', 'v_subb_co', 'v_subrev_co')):
                self.wr = set(R[0]) | set(R[1]); self.rd = flat(R[2:])
            elif mn.startswith('v_nop'):
                self.kind = 'nop'
            else:
                self.wr = set(R[0]); self.rd = flat(R[1:])
                if mn.startswith(('v_fmac', 'v_mac', 'v_pk_fmac', 'v_dot2c')) or self.dpp: self.rd |= set(R[0])
                if mn.startswith('v_cndmask') and len(ops) == 3: self.rd.add(('s', 'vcc'))
                if mn.startswith(('v_readfirstlane', 'v_readlane')): self.kind = 'readlane'
        elif mn.startswith('ds_'):
            self.kind = 'ds'
            if mn.startswith(('ds_read', 'ds_bpermute', 'ds_permute', 'ds_swizzle')) or '_rtn' in mn:
                self.wr = set(R[0]); self.rd = flat(R[1:])
            else: self.rd = flat(R)
        elif mn.startswith(('buffer_', 'global_', 'flat_')):
            self.kind = 'vmem'
            if ' lds' in (' ' + mods) or '_lds_' in mn:
                self.kind = 'dma'; self.rd = flat(R) | {('s', 'm0')}
            elif 'load' in mn:
                self.wr = set(R[0]); self.rd = flat(R[1:])
            elif 'atomic' in mn and 'sc0' in mods:
                self.wr = set(R[0]); self.rd = flat(R)
            elif mn in ('buffer_wbl2', 'buffer_inv'):
                pass
            else:
                self.rd = flat(R)
                if 'x4' in mn or 'x3' in mn:
                    self.kind = 'wstore'
                    self.ab = set(R[0]) if mn.startswith('buffer') else set(R[1])
        elif mn.startswith('s_'):
            self.kind = 'salu'
            if mn.startswith(('s_cbranch', 's_branch')):
                self.kind = 'branch'; self.target = ops[0]
            elif mn.startswith(('s_cmp', 's_waitcnt', 's_barrier', 's_endpgm', 's_setprio', 's_sleep', 's_bitcmp')):
                self.rd = flat(R)
            else:
                self.wr = set(R[0]) if R else set(); self.rd = flat(R[1:])
                if 'saveexec' in mn: self.wr.add(('s', 'exec'))
        else:
            raise ValueError('unknown instr ' + text)

VALUK = ('valu', 'trans', 'permlane', 'readlane')
XD = {2: 5, 4: 8, 8: 12, 16: 20}
XC = {2: 4, 4: 6, 8: 10, 16: 18}
XW = {2: 1, 4: 3, 8: 7, 16: 15}

def need(p, c):
    n = 0
    pv = p.kind in VALUK; cv = c.kind in VALUK
    pw_v = {r for r in p.wr if r[0] != 's'}; pw_s = {r for r in p.wr if r[0] == 's'}
    if pv:
        if c.kind == 'mfma' and (pw_v & c.rd): n = max(n, 2)
        if c.kind == 'permlane' and (pw_v & c.rd): n = max(n, 2)
        if cv and c.dpp and (pw_v & c.rd): n = max(n, 2)
        if c.kind == 'readlane' and (pw_v & c.rd): n = max(n, 1)
        if p.kind == 'trans' and cv and c.kind != 'trans' and (pw_v & c.rd): n = max(n, 1)
        if p.kind == 'trans' and c.kind == 'trans' and (pw_v & c.rd): n = max(n, 1)
        if pw_s:
            if cv and (pw_s & c.rd): n = max(n, 4 if c.kind == 'readlane' else 2)
            if c.kind in ('vmem', 'dma', 'wstore') and (pw_s & c.rd): n = max(n, 5)
            if ('s', 'exec') in pw_s and c.kind == 'mfma': n = max(n, 4)
    if p.kind == 'mfma':
        P = p.passes
        if c.kind == 'mfma':
            if p.wr & c.ab: n = max(n, XD[P])
            if p.wr & c.srcc:
                if p.wr == c.srcc and c.passes == P: n = max(n, 2 if P == 2 else 0)
                else: n = max(n, XC[P])
            elif p.wr & c.wr: n = max(n, XC[P])
        elif cv:
            if p.wr & (c.rd | c.wr): n = max(n, XD[P])
            if p.srcc & c.wr: n = max(n, XW[P])
        elif c.kind in ('ds', 'vmem', 'dma', 'wstore'):
            if p.wr & (c.rd | c.wr): n = max(n, XD[P])
    if p.kind == 'salu' and ('s', 'm0') in p.wr and c.kind == 'dma': n = max(n, 1)
    if p.kind == 'wstore' and (p.ab & c.wr): n = max(n, 2 if cv else 1)
    return n

class Asm:
    def __init__(self):
        self.L = []
        self.nlab = 0
    def __call__(self, txt):
        for line in txt.split('\n'):
            line = line.strip()
            if line: self.L.append(line)
    def label(self, base='L'):
        self.nlab += 1
        return f"{base}_{self.nlab}"
    def extend(self, lines):
        for l in lines: self(l)

def fix_hazards(lines, verbose=False):
    ins = [Ins(l) for l in lines]
    out = []
    def required(hist, c):
        dist = 0; worst = 0
        for p in reversed(hist):
            if dist >= 20: break
            if p.states == 0: continue
            n = need(p, c)
            if n > dist: worst = max(worst, n - dist)
            dist += p.states
        return worst
    hist = []
    ninserted = 0
    for c in ins:
        if c.kind not in ('label', 'dir'):
            w = required(hist, c)
            while w > 0:
                k = min(w, 16)
                nop = Ins(f"s_nop {k-1}")
                out.append(nop); hist.append(nop); w -= k; ninserted += 1
                if verbose: print('  inserted', nop.text, 'before', c.text)
        out.append(c); hist.append(c)
        if c.mn in ('s_branch', 's_endpgm', 's_setpc_b64'):
            hist = []
    labpos = {c.label: i for i, c in enumerate(out) if c.kind == 'label'}
    for i, c in enumerate(out):
        if c.kind == 'branch' and c.target in labpos:
            h = []
            j = i
            tot = 0
            while j >= 0 and tot < 24:
                if out[j].mn in ('s_branch', 's_endpgm') and j != i: break
                h.insert(0, out[j]); tot += out[j].states; j -= 1
            j = labpos[c.target]; tot = 0
            while j < len(out) and tot < 24:
                t = out[j]
                if t.kind not in ('label', 'dir'):
                    w = required(h, t)
                    if w > 0:
                        raise RuntimeError(f"hazard across branch {c.text} -> {t.text}: need {w} more states")
                h.append(t); tot += t.states; j += 1
                if t.mn in ('s_branch', 's_endpgm'): break
    return [c.text for c in out], ninserted

def kernel_header(name):
    return f""".globl {name}
.p2align 8
.type {name},@function
{name}:"""

def kernel_desc(name, vgpr, accum, sgpr=96):
    return f""".p2align 6
.amdhsa_kernel {name}
  .amdhsa_next_free_vgpr {vgpr}
  .amdhsa_next_free_sgpr {sgpr}
  .amdhsa_accum_offset {accum}
  .amdhsa_group_segment_fixed_size 0
  .amdhsa_kernarg_size 96
  .amdhsa_user_sgpr_count 2
  .amdhsa_user_sgpr_kernarg_segment_ptr 1
  .amdhsa_system_sgpr_workgroup_id_x 1
.end_amdhsa_kernel"""

class Stamps:
    def __init__(self, on, base=60, wg=77, tag="X"):
        self.on = on; self.base = base; self.wg = wg; self.tag = tag
    def __call__(self, A, i):
        if not self.on: return
        b = self.base + 4 * i
        A(f"s_memtime {s(b,2)}")
        A(f"s_memrealtime {s(b+2,2)}")
        A("s_waitcnt lgkmcnt(0)")
    def dump_abs(self, A, n, wave_sgpr, tmp, back, slot0):
        if not self.on: return
        A(f"s_load_dwordx2 {s(tmp+4,2)}, s[0:1], 80")
        A("s_waitcnt lgkmcnt(0)")
        A(f"s_add_u32 {s(tmp)}, {s(tmp+4)}, {back}\ns_addc_u32 {s(tmp+1)}, {s(tmp+5)}, 0\ns_and_b32 {s(tmp+1)}, {s(tmp+1)}, 0xffff\ns_mov_b32 {s(tmp+2)}, 256\ns_mov_b32 {s(tmp+3)}, 0x00020000")
        A(f"s_cmp_eq_u32 s2, {self.wg}\ns_cbranch_scc0 {self.tag}_NOST")
        A(f"s_cmp_eq_u32 {s(wave_sgpr)}, 0\ns_cbranch_scc0 {self.tag}_NOST")
        A("v_mov_b32 v2, 0")
        for k, i in enumerate(n):
            b = self.base + 4 * i
            A(f"v_mov_b32 v3, {s(b+2)}")
            A(f"buffer_store_dword v3, v2, {s(tmp,4)}, 0 offen offset:{4*(slot0+k)}")
        A(f"{self.tag}_NOST:")
    def dump_minmax(self, A, last, tmp, back, slot_sgpr_or_int):
        A(f"s_load_dwordx2 {s(tmp+4,2)}, s[0:1], 80")
        A("s_waitcnt lgkmcnt(0)")
        A(f"s_add_u32 {s(tmp)}, {s(tmp+4)}, {back}\ns_addc_u32 {s(tmp+1)}, {s(tmp+5)}, 0\ns_and_b32 {s(tmp+1)}, {s(tmp+1)}, 0xffff\ns_mov_b32 {s(tmp+2)}, 256\ns_mov_b32 {s(tmp+3)}, 0x00020000")
        A("v_mov_b32 v2, 0")
        A(f"v_mov_b32 v3, {s(self.base + 4*last + 2)}")
        A(f"s_not_b32 {s(tmp+5)}, {s(self.base + 2)}")
        A(f"v_mov_b32 v4, {s(tmp+5)}")
        A("s_mov_b64 exec, 1")
        A(f"buffer_atomic_umax v3, v2, {s(tmp,4)}, {slot_sgpr_or_int} offen sc1")
        A(f"buffer_atomic_umax v4, v2, {s(tmp,4)}, {slot_sgpr_or_int} offen offset:4 sc1")
    def dump(self, A, n, wave_sgpr, tmp, maxrow=8):
        if getattr(self, 'mm', None): return self.dump_minmax(A, n - 1, tmp, self.mm[0], self.mm[1])
        if getattr(self, 'abs', None): return self.dump_abs(A, self.abs[0], wave_sgpr, tmp, self.abs[1], self.abs[2])
        if not self.on: return
        A(f"s_load_dwordx2 {s(tmp+4,2)}, s[0:1], 80")
        A("s_waitcnt lgkmcnt(0)")
        A(f"s_mov_b32 {s(tmp)}, {s(tmp+4)}\ns_and_b32 {s(tmp+1)}, {s(tmp+5)}, 0xffff\ns_mov_b32 {s(tmp+2)}, 256\ns_mov_b32 {s(tmp+3)}, 0x00020000")
        A(f"s_cmp_eq_u32 s2, {self.wg}\ns_cbranch_scc0 {self.tag}_NOST")
        A(f"s_lshl_b32 {s(tmp+4)}, {s(wave_sgpr)}, 5")
        A("v_mov_b32 v2, 0")
        for i in range(1, n):
            b = self.base + 4 * i
            A(f"s_sub_u32 {s(tmp+5)}, {s(b)}, {s(self.base)}")
            A(f"s_sub_u32 {s(tmp+6)}, {s(b+2)}, {s(self.base+2)}")
            A(f"s_lshl_b32 {s(tmp+6)}, {s(tmp+6)}, 20")
            A(f"s_or_b32 {s(tmp+5)}, {s(tmp+5)}, {s(tmp+6)}")
            A(f"v_mov_b32 v3, {s(tmp+5)}")
            A(f"buffer_store_dword v3, v2, {s(tmp,4)}, {s(tmp+4)} offen offset:{4*(i-1)}")
        A(f"{self.tag}_NOST:")
```

```python
import re

def v(i, n=1): return f"v{i}" if n == 1 else f"v[{i}:{i+n-1}]"
def a(i, n=1): return f"a{i}" if n == 1 else f"a[{i}:{i+n-1}]"
def s(i, n=1): return f"s{i}" if n == 1 else f"s[{i}:{i+n-1}]"

_REG = re.compile(r'^(-|abs\()?([vas])(?:(\d+)|\[(\d+):(\d+)\])\)?$')

def parse_reg(tok):
    t = tok.strip()
    if t.startswith('-'): t = t[1:]
    if t.startswith('|') and t.endswith('|'): t = t[1:-1]
    if t.startswith('abs(') and t.endswith(')'): t = t[4:-1]
    if t == 'vcc': return [('s', 'vcc')]
    if t in ('vcc_lo', 'vcc_hi'): return [('s', 'vcc')]
    if t == 'exec': return [('s', 'exec')]
    if t == 'm0': return [('s', 'm0')]
    m = re.match(r'^([vas])(?:(\d+)|\[(\d+):(\d+)\])$', t)
    if not m: return []
    k = m.group(1)
    if m.group(2) is not None: return [(k, int(m.group(2)))]
    return [(k, i) for i in range(int(m.group(3)), int(m.group(4)) + 1)]

TRANS = ('v_exp_f32', 'v_log_f32', 'v_rcp_f32', 'v_rsq_f32', 'v_sqrt_f32', 'v_sin_f32', 'v_cos_f32', 'v_rcp_iflag_f32')

def split_ops(txt):
    ops = []; depth = 0; cur = ''
    for ch in txt:
        if ch in '[(': depth += 1
        if ch in '])': depth -= 1
        if ch == ',' and depth == 0:
            ops.append(cur.strip()); cur = ''
        else: cur += ch
    if cur.strip(): ops.append(cur.strip())
    return ops

class Ins:
    __slots__ = ('text', 'mn', 'rd', 'wr', 'kind', 'passes', 'srcc', 'ab', 'states', 'dpp', 'label', 'target')
    def __init__(self, text):
        self.text = text
        t = text.split(';')[0].strip()
        self.label = None; self.target = None
        self.rd = set(); self.wr = set(); self.kind = 'other'; self.passes = 0; self.srcc = set(); self.ab = set(); self.states = 1; self.dpp = False
        if t.endswith(':'):
            self.mn = ''; self.kind = 'label'; self.label = t[:-1]; self.states = 0; return
        if not t or t.startswith('.'):
            self.mn = ''; self.kind = 'dir'; self.states = 0; return
        parts = t.split(None, 1)
        mn = parts[0]; self.mn = mn
        rest = parts[1] if len(parts) > 1 else ''
        ops = split_ops(rest)
        mods = ''
        if ops:
            last = ops[-1].split()
            if len(last) > 1:
                ops[-1] = last[0]; mods = ' '.join(last[1:])
        R = [parse_reg(o) for o in ops]
        flat = lambda L: set(x for l in L for x in l)
        if mn == 's_nop':
            self.kind = 'nop'; self.states = int(ops[0], 0) + 1
        elif mn.startswith('v_mfma'):
            self.kind = 'mfma'
            self.passes = 8 if '32x32x16' in mn else 4 if '16x16x32' in mn else 2 if '4x4x4' in mn else None
            assert self.passes, mn
            self.wr = set(R[0]); self.ab = set(R[1]) | set(R[2]); self.srcc = set(R[3]); self.rd = self.ab | self.srcc
        elif mn.startswith('v_'):
            self.kind = 'trans' if mn.replace('_e32', '').replace('_e64', '') in TRANS else 'valu'
            if 'dpp' in mn or 'quad_perm' in mods or 'row_' in mods: self.dpp = True
            if mn.startswith('v_permlane') and 'swap' in mn:
                self.kind = 'permlane'; self.rd = flat(R); self.wr = flat(R)
            elif mn.startswith('v_cmp'):
                self.wr = set(R[0]); self.rd = flat(R[1:])
            elif mn.startswith(('v_add_co', 'v_sub_co', 'v_addc_co', 'v_subb_co', 'v_subrev_co')):
                self.wr = set(R[0]) | set(R[1]); self.rd = flat(R[2:])
            elif mn.startswith('v_nop'):
                self.kind = 'nop'
            else:
                self.wr = set(R[0]); self.rd = flat(R[1:])
                if mn.startswith(('v_fmac', 'v_mac', 'v_pk_fmac', 'v_dot2c')) or self.dpp: self.rd |= set(R[0])
                if mn.startswith('v_cndmask') and len(ops) == 3: self.rd.add(('s', 'vcc'))
                if mn.startswith(('v_readfirstlane', 'v_readlane')): self.kind = 'readlane'
        elif mn.startswith('ds_'):
            self.kind = 'ds'
            if mn.startswith(('ds_read', 'ds_bpermute', 'ds_permute', 'ds_swizzle')) or '_rtn' in mn:
                self.wr = set(R[0]); self.rd = flat(R[1:])
            else: self.rd = flat(R)
        elif mn.startswith(('buffer_', 'global_', 'flat_')):
            self.kind = 'vmem'
            if ' lds' in (' ' + mods) or '_lds_' in mn:
                self.kind = 'dma'; self.rd = flat(R) | {('s', 'm0')}
            elif 'load' in mn:
                self.wr = set(R[0]); self.rd = flat(R[1:])
            elif 'atomic' in mn and 'sc0' in mods:
                self.wr = set(R[0]); self.rd = flat(R)
            elif mn in ('buffer_wbl2', 'buffer_inv'):
                pass
            else:
                self.rd = flat(R)
                if 'x4' in mn or 'x3' in mn:
                    self.kind = 'wstore'
                    self.ab = set(R[0]) if mn.startswith('buffer') else set(R[1])
        elif mn.startswith('s_'):
            self.kind = 'salu'
            if mn.startswith(('s_cbranch', 's_branch')):
                self.kind = 'branch'; self.target = ops[0]
            elif mn.startswith(('s_cmp', 's_waitcnt', 's_barrier', 's_endpgm', 's_setprio', 's_sleep', 's_bitcmp')):
                self.rd = flat(R)
            else:
                self.wr = set(R[0]) if R else set(); self.rd = flat(R[1:])
                if 'saveexec' in mn: self.wr.add(('s', 'exec'))
        else:
            raise ValueError('unknown instr ' + text)

VALUK = ('valu', 'trans', 'permlane', 'readlane')
XD = {2: 5, 4: 8, 8: 12, 16: 20}
XC = {2: 4, 4: 6, 8: 10, 16: 18}
XW = {2: 1, 4: 3, 8: 7, 16: 15}

def need(p, c):
    n = 0
    pv = p.kind in VALUK; cv = c.kind in VALUK
    pw_v = {r for r in p.wr if r[0] != 's'}; pw_s = {r for r in p.wr if r[0] == 's'}
    if pv:
        if c.kind == 'mfma' and (pw_v & c.rd): n = max(n, 2)
        if c.kind == 'permlane' and (pw_v & c.rd): n = max(n, 2)
        if cv and c.dpp and (pw_v & c.rd): n = max(n, 2)
        if c.kind == 'readlane' and (pw_v & c.rd): n = max(n, 1)
        if p.kind == 'trans' and cv and c.kind != 'trans' and (pw_v & c.rd): n = max(n, 1)
        if p.kind == 'trans' and c.kind == 'trans' and (pw_v & c.rd): n = max(n, 1)
        if pw_s:
            if cv and (pw_s & c.rd): n = max(n, 4 if c.kind == 'readlane' else 2)
            if c.kind in ('vmem', 'dma', 'wstore') and (pw_s & c.rd): n = max(n, 5)
            if ('s', 'exec') in pw_s and c.kind == 'mfma': n = max(n, 4)
    if p.kind == 'mfma':
        P = p.passes
        if c.kind == 'mfma':
            if p.wr & c.ab: n = max(n, XD[P])
            if p.wr & c.srcc:
                if p.wr == c.srcc and c.passes == P: n = max(n, 2 if P == 2 else 0)
                else: n = max(n, XC[P])
            elif p.wr & c.wr: n = max(n, XC[P])
        elif cv:
            if p.wr & (c.rd | c.wr): n = max(n, XD[P])
            if p.srcc & c.wr: n = max(n, XW[P])
        elif c.kind in ('ds', 'vmem', 'dma', 'wstore'):
            if p.wr & (c.rd | c.wr): n = max(n, XD[P])
    if p.kind == 'salu' and ('s', 'm0') in p.wr and c.kind == 'dma': n = max(n, 1)
    if p.kind == 'wstore' and (p.ab & c.wr): n = max(n, 2 if cv else 1)
    return n

class Asm:
    def __init__(self):
        self.L = []
        self.nlab = 0
    def __call__(self, txt):
        for line in txt.split('\n'):
            line = line.strip()
            if line: self.L.append(line)
    def label(self, base='L'):
        self.nlab += 1
        return f"{base}_{self.nlab}"
    def extend(self, lines):
        for l in lines: self(l)

def fix_hazards(lines, verbose=False):
    ins = [Ins(l) for l in lines]
    out = []
    def required(hist, c):
        dist = 0; worst = 0
        for p in reversed(hist):
            if dist >= 20: break
            if p.states == 0: continue
            n = need(p, c)
            if n > dist: worst = max(worst, n - dist)
            dist += p.states
        return worst
    hist = []
    ninserted = 0
    for c in ins:
        if c.kind not in ('label', 'dir'):
            w = required(hist, c)
            while w > 0:
                k = min(w, 16)
                nop = Ins(f"s_nop {k-1}")
                out.append(nop); hist.append(nop); w -= k; ninserted += 1
                if verbose: print('  inserted', nop.text, 'before', c.text)
        out.append(c); hist.append(c)
        if c.mn in ('s_branch', 's_endpgm', 's_setpc_b64'):
            hist = []
    labpos = {c.label: i for i, c in enumerate(out) if c.kind == 'label'}
    for i, c in enumerate(out):
        if c.kind == 'branch' and c.target in labpos:
            h = []
            j = i
            tot = 0
            while j >= 0 and tot < 24:
                if out[j].mn in ('s_branch', 's_endpgm') and j != i: break
                h.insert(0, out[j]); tot += out[j].states; j -= 1
            j = labpos[c.target]; tot = 0
            while j < len(out) and tot < 24:
                t = out[j]
                if t.kind not in ('label', 'dir'):
                    w = required(h, t)
                    if w > 0:
                        raise RuntimeError(f"hazard across branch {c.text} -> {t.text}: need {w} more states")
                h.append(t); tot += t.states; j += 1
                if t.mn in ('s_branch', 's_endpgm'): break
    return [c.text for c in out], ninserted

def kernel_header(name):
    return f""".globl {name}
.p2align 8
.type {name},@function
{name}:"""

def kernel_desc(name, vgpr, accum, sgpr=96):
    return f""".p2align 6
.amdhsa_kernel {name}
  .amdhsa_next_free_vgpr {vgpr}
  .amdhsa_next_free_sgpr {sgpr}
  .amdhsa_accum_offset {accum}
  .amdhsa_group_segment_fixed_size 0
  .amdhsa_kernarg_size 96
  .amdhsa_user_sgpr_count 2
  .amdhsa_user_sgpr_kernarg_segment_ptr 1
  .amdhsa_system_sgpr_workgroup_id_x 1
.end_amdhsa_kernel"""

class Stamps:
    def __init__(self, on, base=60, wg=77, tag="X"):
        self.on = on; self.base = base; self.wg = wg; self.tag = tag
    def __call__(self, A, i):
        if not self.on: return
        b = self.base + 4 * i
        A(f"s_memtime {s(b,2)}")
        A(f"s_memrealtime {s(b+2,2)}")
        A("s_waitcnt lgkmcnt(0)")
    def dump_abs(self, A, n, wave_sgpr, tmp, back, slot0):
        if not self.on: return
        A(f"s_load_dwordx2 {s(tmp+4,2)}, s[0:1], 80")
        A("s_waitcnt lgkmcnt(0)")
        A(f"s_add_u32 {s(tmp)}, {s(tmp+4)}, {back}\ns_addc_u32 {s(tmp+1)}, {s(tmp+5)}, 0\ns_and_b32 {s(tmp+1)}, {s(tmp+1)}, 0xffff\ns_mov_b32 {s(tmp+2)}, 256\ns_mov_b32 {s(tmp+3)}, 0x00020000")
        A(f"s_cmp_eq_u32 s2, {self.wg}\ns_cbranch_scc0 {self.tag}_NOST")
        A(f"s_cmp_eq_u32 {s(wave_sgpr)}, 0\ns_cbranch_scc0 {self.tag}_NOST")
        A("v_mov_b32 v2, 0")
        for k, i in enumerate(n):
            b = self.base + 4 * i
            A(f"v_mov_b32 v3, {s(b+2)}")
            A(f"buffer_store_dword v3, v2, {s(tmp,4)}, 0 offen offset:{4*(slot0+k)}")
        A(f"{self.tag}_NOST:")
    def dump_minmax(self, A, last, tmp, back, slot, cond):
        A(cond)
        A(f"s_load_dwordx2 {s(tmp+4,2)}, s[0:1], 80")
        A("s_waitcnt lgkmcnt(0)")
        A(f"s_add_u32 {s(tmp)}, {s(tmp+4)}, {back}\ns_addc_u32 {s(tmp+1)}, {s(tmp+5)}, 0\ns_and_b32 {s(tmp+1)}, {s(tmp+1)}, 0xffff\ns_mov_b32 {s(tmp+2)}, 256\ns_mov_b32 {s(tmp+3)}, 0x00020000")
        A("v_mov_b32 v2, 0")
        A(f"v_mov_b32 v3, {s(self.base + 4*last + 2)}")
        A(f"s_not_b32 {s(tmp+5)}, {s(self.base + 2)}")
        A(f"v_mov_b32 v4, {s(tmp+5)}")
        A("s_mov_b64 exec, 1")
        A(f"buffer_atomic_umax v3, v2, {s(tmp,4)}, {slot} offen sc1")
        A(f"buffer_atomic_umax v4, v2, {s(tmp,4)}, {slot} offen offset:4 sc1")
        A(f"{self.tag}_NOST:")
    def dump(self, A, n, wave_sgpr, tmp, maxrow=8):
        if getattr(self, 'mm', None): return self.dump_minmax(A, n - 1, tmp, self.mm[0], self.mm[1], self.mm[2])
        if getattr(self, 'abs', None): return self.dump_abs(A, self.abs[0], wave_sgpr, tmp, self.abs[1], self.abs[2])
        if not self.on: return
        A(f"s_load_dwordx2 {s(tmp+4,2)}, s[0:1], 80")
        A("s_waitcnt lgkmcnt(0)")
        A(f"s_mov_b32 {s(tmp)}, {s(tmp+4)}\ns_and_b32 {s(tmp+1)}, {s(tmp+5)}, 0xffff\ns_mov_b32 {s(tmp+2)}, 256\ns_mov_b32 {s(tmp+3)}, 0x00020000")
        A(f"s_cmp_eq_u32 s2, {self.wg}\ns_cbranch_scc0 {self.tag}_NOST")
        A(f"s_lshl_b32 {s(tmp+4)}, {s(wave_sgpr)}, 5")
        A("v_mov_b32 v2, 0")
        for i in range(1, n):
            b = self.base + 4 * i
            A(f"s_sub_u32 {s(tmp+5)}, {s(b)}, {s(self.base)}")
            A(f"s_sub_u32 {s(tmp+6)}, {s(b+2)}, {s(self.base+2)}")
            A(f"s_lshl_b32 {s(tmp+6)}, {s(tmp+6)}, 20")
            A(f"s_or_b32 {s(tmp+5)}, {s(tmp+5)}, {s(tmp+6)}")
            A(f"v_mov_b32 v3, {s(tmp+5)}")
            A(f"buffer_store_dword v3, v2, {s(tmp,4)}, {s(tmp+4)} offen offset:{4*(i-1)}")
        A(f"{self.tag}_NOST:")
```
